```python
import torch

def _softmax(x, axis=-1):
    return torch.softmax(x, dim=axis)
def _gelu(x):
    return torch.nn.functional.gelu(x, approximate="tanh")
def _silu(x):
    return torch.nn.functional.silu(x)
def _sigmoid(x):
    return torch.sigmoid(x)
def _layernorm(x, axis=-1, eps=1e-5):
    m = x.mean(dim=axis, keepdim=True)
    v = x.var(dim=axis, keepdim=True, unbiased=False)
    return (x - m) / torch.sqrt(v + eps)
def _scatter_add(tgt, idx, src, axis=0):
    return tgt.clone().index_add_(axis, idx, src)
def _segment_sum(src, seg, n):
    out = torch.zeros((n,) + src.shape[1:], dtype=src.dtype)
    return out.index_add_(0, seg, src)
def _pad(x, pw):
    flat = tuple(v for pair in reversed(pw) for v in pair)
    return torch.nn.functional.pad(x, flat)

kernel_name = 'standalone__mha_softmax__decode'

def setup_inputs():

    _w = (lambda a: (lambda t: t.to(torch.bfloat16) if t.is_floating_point() else t)(torch.as_tensor(a)))
    B, H, Sq, Sk, D = 2, 32, 1, 4096, 128
    return {
        "q": _w((lambda *s: torch.randn(*s, dtype=torch.bfloat16) * 0.8)(B, H, Sq, D)),
        "k": _w((lambda *s: torch.randn(*s, dtype=torch.bfloat16) * 0.8)(B, H, Sk, D)),
        "v": _w((lambda *s: torch.randn(*s, dtype=torch.bfloat16) * 0.05)(B, H, Sk, D)),
    }

def reference(q, k, v):
    scale = q.shape[-1] ** -0.5
    scores = torch.einsum("bhqd,bhkd->bhqk", q, k) * scale
    p = _softmax(scores, axis=-1)
    return torch.einsum("bhqk,bhkd->bhqd", p, v)
```

```python
import sys, math

HDR = """; Kernarg layout for this problem (48 bytes, ptrs only, base s[0:1]):
"""
NAME = "standalone__mha_softmax__decode_kernel"

def gen(NSPLIT=4, NW=8, R=48, pol="nt", layout="il1k", G=4, latebar=8, stamps=False, rot=0):
    NWG = 64 * NSPLIT
    KW = 4096 // NSPLIT // NW
    NL = KW // 4
    R = min(R, 2 * NL)
    assert R <= 60
    SPLIT_BYTES = (1 << 20) // NSPLIT
    o = []
    e = o.append
    sK, sV, sQ, sO, sD, sW = 4, 8, 12, 16, 20, 24
    sHead, sSplit, sWave, sC = 28, 29, 30, 31
    sT = 32
    sOff0 = 48
    vTid = 0
    vOff = 1
    vLane = 2
    vM = 3
    vL = 4
    vF = 5
    vT0 = 6
    vT1 = 7
    vQ = 8
    vMask = 12
    vAcc = 16
    vA = 20
    vMb = 28
    vFlag = 29
    vS = 32
    vRing = vS + ((NL + 3) // 4) * 4
    nv = vRing + 4 * R
    nv = max(nv, vRing + 4 * max(NW, NSPLIT))
    assert nv <= 256, nv
    if layout == "il1k":
        offs = [i * NW * 1024 for i in range(NL)]
    elif layout == "il4k":
        offs = [(i // 4) * NW * 4096 + (i % 4) * 1024 for i in range(NL)]
    elif layout == "contig":
        offs = [i * 1024 for i in range(NL)]
    soffs = sorted(set(x - x % 4096 for x in offs))
    sreg = {}
    n = sOff0
    for x in soffs:
        if x == 0:
            sreg[x] = "0"
        else:
            sreg[x] = f"s{n}"
            n += 1
    nsg = n
    assert nsg <= 100
    lds_bytes = NW * 1024 + 64
    LDS_M = NW * 1024

    def load(nn):
        srd = sK if nn < NL else sV
        i = nn % NL
        slot = vRing + 4 * (nn % R)
        x = offs[i]
        imm = x % 4096
        e(f"    buffer_load_dwordx4 v[{slot}:{slot+3}], v{vOff}, s[{srd}:{srd+3}], {sreg[x - imm]} offen offset:{imm} {pol}".rstrip())

    e(HDR + f"; @launch grid=({NWG},1,1) block=({NW*64},1,1) lds={lds_bytes}")
    e('.amdgcn_target "amdgcn-amd-amdhsa--gfx950"')
    e(".text")
    e(f".globl {NAME}")
    e(".p2align 8")
    e(f".type {NAME},@function")
    e(f"{NAME}:")
    e(f"    s_cmp_ge_u32 s2, {NWG}")
    e("    s_cbranch_scc1 L_end")
    e(f"    s_load_dwordx2 s[{sK}:{sK+1}], s[0:1], 8")
    e(f"    s_load_dwordx2 s[{sQ}:{sQ+1}], s[0:1], 0")
    e(f"    s_load_dwordx2 s[{sV}:{sV+1}], s[0:1], 16")
    e(f"    s_load_dwordx2 s[{sO}:{sO+1}], s[0:1], 24")
    e(f"    s_load_dwordx2 s[{sD}:{sD+1}], s[0:1], 32")
    e(f"    s_load_dwordx2 s[{sW}:{sW+1}], s[0:1], 40")
    for r, sz in ((sK, 1 << 26), (sV, 1 << 26), (sQ, 16384), (sO, 16384), (sD, 256), (sW, 1 << 28)):
        e(f"    s_mov_b32 s{r+2}, {hex(sz)}")
        e(f"    s_mov_b32 s{r+3}, 0x00020000")
    lg = int(math.log2(NSPLIT))
    e(f"    s_lshr_b32 s{sHead}, s2, {lg}")
    e(f"    s_and_b32 s{sSplit}, s2, {NSPLIT-1}")
    e(f"    s_lshl_b32 s3, s2, {20-lg}")
    e(f"    v_and_b32 v{vLane}, 63, v0")
    e(f"    v_lshrrev_b32 v{vT0}, 6, v0")
    if layout == "il1k":
        e(f"    v_lshl_add_u32 v{vOff}, v0, 4, s3")
    else:
        wsh = 12 if layout == "il4k" else int(math.log2(NL * 1024))
        e(f"    v_lshl_add_u32 v{vOff}, v{vLane}, 4, s3")
        e(f"    v_lshl_add_u32 v{vOff}, v{vT0}, {wsh}, v{vOff}")
    e(f"    v_readfirstlane_b32 s{sWave}, v{vT0}")
    e(f"    s_lshl_b32 s{sT}, s{sHead}, 8")
    e(f"    v_and_b32 v{vT1}, 15, v0")
    e(f"    v_lshl_add_u32 v{vT1}, v{vT1}, 4, s{sT}")
    e(f"    s_lshl_b32 s{sT+1}, s2, 10")
    e(f"    v_lshl_add_u32 v{vMb}, v{vLane}, 4, s{sT+1}")
    for x in soffs:
        if x:
            e(f"    s_mov_b32 {sreg[x]}, {hex(x)}")
    for r in range(4):
        e(f"    v_mov_b32 v{vAcc+r}, -1")
    c = math.log2(math.e) / math.sqrt(128.0)
    import struct
    cbits = struct.unpack("<I", struct.pack("<f", c))[0]
    e(f"    s_mov_b32 s{sC}, {hex(cbits)}")
    sRole = sT + 2
    e(f"    s_cmp_eq_u32 s{sSplit}, 0")
    e(f"    s_cselect_b32 s{sRole}, 2, 1")
    e(f"    s_cmp_eq_u32 s{sWave}, 0")
    e(f"    s_cselect_b32 s{sRole}, s{sRole}, 0")
    e("    s_waitcnt lgkmcnt(0)")
    e(f"    s_cmp_eq_u32 s{sRole}, 1")
    e("    s_cbranch_scc0 L_noclear")
    e(f"    buffer_store_dwordx4 v[{vAcc}:{vAcc+3}], v{vMb}, s[{sW}:{sW+3}], 0 offen sc1")
    e("L_noclear:")
    e(f"    buffer_load_dwordx4 v[{vQ}:{vQ+3}], v{vT1}, s[{sQ}:{sQ+3}], 0 offen")
    for nn in range(R):
        load(nn)
    e(f"    v_and_b32 v{vT0}, 1, v0")
    e(f"    v_lshlrev_b32 v{vT0}, 4, v{vT0}")
    e(f"    v_mov_b32 v{vT1}, 0xffff")
    e(f"    v_lshlrev_b32 v{vT0}, v{vT0}, v{vT1}")
    e(f"    v_bfe_u32 v{vT1}, v0, 1, 3")
    for r in range(4):
        e(f"    v_cmp_eq_u32 vcc, {r}, v{vT1}")
        e("    s_nop 1")
        e(f"    v_cndmask_b32 v{vMask+r}, 0, v{vT0}, vcc")
    issued = R
    total = 2 * NL
    first = True
    for g0 in range(0, NL, G):
        grp = list(range(g0, min(NL, g0 + G)))
        last = grp[-1]
        e(f"    s_waitcnt vmcnt({issued - 1 - last})")
        if first:
            first = False
            e(f"    s_cmp_eq_u32 s{sRole}, 1")
            e("    s_cbranch_scc0 L_noflag")
            e(f"    s_lshl_b32 s{sT+3}, s{sHead}, 2")
            e(f"    v_mov_b32 v{vT0}, s{sT+3}")
            e(f"    v_mov_b32 v{vT1}, 1")
            e("    s_mov_b64 exec, 1")
            e(f"    buffer_atomic_add v{vT1}, v{vT0}, s[{sD}:{sD+3}], 0 offen sc1")
            e("    s_mov_b64 exec, -1")
            e("L_noflag:")
        for r in range(4):
            for i in grp:
                slot = vRing + 4 * (i % R)
                src2 = "0" if r == 0 else f"v{vS+i}"
                e(f"    v_dot2_f32_bf16 v{vS+i}, v{slot+r}, v{vQ+r}, {src2}")
        for i in grp:
            if issued < total:
                load(issued); issued += 1
        if len(grp) < 4:
            e(f"    s_nop {3 - len(grp)}")
        for sh in (8, 4, 2, 1):
            for i in grp:
                e(f"    v_add_f32_dpp v{vS+i}, v{vS+i}, v{vS+i} row_ror:{sh} row_mask:0xf bank_mask:0xf")
            if len(grp) < 3:
                e(f"    s_nop {2 - len(grp)}")
    e(f"    v_max_f32 v{vM}, v{vS}, v{vS+1}")
    for i in range(2, NL, 2):
        e(f"    v_max3_f32 v{vM}, v{vM}, v{vS+i}, v{vS+i+1}")
    e(f"    v_mov_b32 v{vT0}, v{vM}")
    e("    s_nop 1")
    e(f"    v_permlane32_swap_b32 v{vM}, v{vT0}")
    e("    s_nop 1")
    e(f"    v_max_f32 v{vM}, v{vM}, v{vT0}")
    e(f"    v_mov_b32 v{vT0}, v{vM}")
    e("    s_nop 1")
    e(f"    v_permlane16_swap_b32 v{vM}, v{vT0}")
    e("    s_nop 1")
    e(f"    v_max_f32 v{vM}, v{vM}, v{vT0}")
    e(f"    v_mul_f32 v{vM}, s{sC}, v{vM}")
    e(f"    s_lshl_b32 s{sT+3}, s{sWave}, 2")
    e(f"    v_mov_b32 v{vT0}, s{sT+3}")
    e(f"    ds_write_b32 v{vT0}, v{vM} offset:{LDS_M}")
    for i in range(NL):
        e(f"    v_fma_f32 v{vS+i}, v{vS+i}, s{sC}, -v{vM}")
    for i in range(NL):
        e(f"    v_exp_f32 v{vS+i}, v{vS+i}")
    e(f"    v_add_f32 v{vL}, v{vS}, v{vS+1}")
    e(f"    v_add_f32 v{vT1}, v{vS+2}, v{vS+3}")
    for i in range(4, NL, 2):
        e(f"    v_add_f32 v{vL}, v{vL}, v{vS+i}")
        e(f"    v_add_f32 v{vT1}, v{vT1}, v{vS+i+1}")
    e(f"    v_add_f32 v{vL}, v{vL}, v{vT1}")
    for i in range(NL):
        e(f"    v_cvt_pk_bf16_f32 v{vS+i}, v{vS+i}, v{vS+i}")
    e(f"    v_mov_b32 v{vT0}, v{vL}")
    e("    s_nop 1")
    e(f"    v_permlane32_swap_b32 v{vL}, v{vT0}")
    e("    s_nop 1")
    e(f"    v_add_f32 v{vL}, v{vL}, v{vT0}")
    e(f"    v_mov_b32 v{vT0}, v{vL}")
    e("    s_nop 1")
    e(f"    v_permlane16_swap_b32 v{vL}, v{vT0}")
    e("    s_nop 1")
    e(f"    v_add_f32 v{vL}, v{vL}, v{vT0}")
    e(f"    v_cmp_le_u32 vcc, 32, v{vLane}")
    e(f"    v_mov_b32 v{vAcc+1}, 0")
    e(f"    v_mov_b32 v{vAcc+2}, 0")
    e(f"    v_mov_b32 v{vAcc+3}, 0")
    e(f"    v_cndmask_b32 v{vAcc}, 0, v{vL}, vcc")
    barpos = max(0, NL - latebar)
    for i in range(NL):
        nn = NL + i
        a = vA + 4 * (i % 2)
        slot = vRing + 4 * (nn % R)
        if i == barpos:
            e("    s_waitcnt lgkmcnt(0)")
            e("    s_barrier")
            e(f"    v_mov_b32 v{vT0}, 0")
            assert barpos >= NW or NW <= 8
            tmp = vS if barpos >= NW else None
            assert tmp is not None
            for w in range(0, NW, 4):
                e(f"    ds_read_b128 v[{tmp+w}:{tmp+w+3}], v{vT0} offset:{LDS_M + 4*w}")
            e(f"    s_cmp_eq_u32 s{sRole}, 2")
            e("    s_cbranch_scc0 L_noflagld")
            e(f"    s_lshl_b32 s{sT+3}, s{sHead}, 2")
            e(f"    buffer_load_dword v{vFlag}, v{vT0}, s[{sD}:{sD+3}], s{sT+3} offen sc1")
            e("L_noflagld:")
            e("    s_waitcnt lgkmcnt(0)")
            e(f"    v_max_f32 v{vT1}, v{tmp}, v{tmp+1}")
            for w in range(2, NW, 2):
                e(f"    v_max3_f32 v{vT1}, v{vT1}, v{tmp+w}, v{tmp+w+1}")
            e(f"    v_sub_f32 v{vF}, v{vM}, v{vT1}")
            e(f"    v_exp_f32 v{vF}, v{vF}")
            e(f"    v_mov_b32 v{vM}, v{vT1}")
        for r in range(4):
            e(f"    v_and_b32 v{a+r}, v{vS+i}, v{vMask+r}")
        e(f"    s_waitcnt vmcnt({issued - 1 - nn})")
        e("    s_nop 0")
        e(f"    v_mfma_f32_16x16x32_bf16 v[{vAcc}:{vAcc+3}], v[{a}:{a+3}], v[{slot}:{slot+3}], v[{vAcc}:{vAcc+3}]")
        if issued < total:
            load(issued); issued += 1
    e(f"    v_lshlrev_b32 v{vT0}, 4, v0")
    e(f"    v_lshlrev_b32 v{vT1}, 4, v{vLane}")
    e("    s_nop 5")
    for r in range(4):
        e(f"    v_mul_f32 v{vAcc+r}, v{vF}, v{vAcc+r}")
    e(f"    ds_write_b128 v{vT0}, v[{vAcc}:{vAcc+3}]")
    e("    s_waitcnt lgkmcnt(0)")
    e("    s_barrier")
    e(f"    s_cmp_eq_u32 s{sRole}, 0")
    e("    s_cbranch_scc1 L_end")
    for w in range(1, NW):
        b = vRing + 4 * w
        e(f"    ds_read_b128 v[{b}:{b+3}], v{vT1} offset:{w*1024}")
    e("    s_mov_b32 exec_lo, -1")
    e("    s_mov_b32 exec_hi, 1")
    e(f"    v_cmp_le_u32 vcc, 32, v{vLane}")
    for w in range(1, NW):
        b = vRing + 4 * w
        e(f"    s_waitcnt lgkmcnt({NW-1-w})")
        e(f"    v_pk_add_f32 v[{vAcc}:{vAcc+1}], v[{vAcc}:{vAcc+1}], v[{b}:{b+1}]")
        e(f"    v_pk_add_f32 v[{vAcc+2}:{vAcc+3}], v[{vAcc+2}:{vAcc+3}], v[{b+2}:{b+3}]")
    e(f"    v_cndmask_b32 v{vAcc+1}, v{vAcc+1}, v{vM}, vcc")
    e(f"    s_cmp_eq_u32 s{sRole}, 2")
    e("    s_cbranch_scc1 L_consumer")
    for r in range(4):
        e(f"    v_min_u32 v{vAcc+r}, -2, v{vAcc+r}")
    e(f"    buffer_store_dwordx4 v[{vAcc}:{vAcc+3}], v{vMb}, s[{sW}:{sW+3}], 0 offen sc1")
    e("    s_endpgm")
    e("L_consumer:")
    sCnt = sT + 4
    e(f"    s_mov_b32 s{sCnt}, 0x100000")
    e(f"    v_mov_b32 v{vT0}, 0")
    e("L_flagspin:")
    e(f"    v_readfirstlane_b32 s{sT+5}, v{vFlag}")
    e(f"    s_cmp_ge_u32 s{sT+5}, {NSPLIT-1}")
    e("    s_cbranch_scc1 L_poll")
    e(f"    buffer_load_dword v{vFlag}, v{vT0}, s[{sD}:{sD+3}], s{sT+3} offen sc1")
    e(f"    s_sub_u32 s{sCnt}, s{sCnt}, 1")
    e(f"    s_cmp_eq_u32 s{sCnt}, 0")
    e("    s_waitcnt vmcnt(0)")
    e("    s_cbranch_scc0 L_flagspin")
    e("L_poll:")
    for p in range(1, NSPLIT):
        b = vRing + 4 * p
        off = p * 1024
        if off < 4096:
            e(f"    buffer_load_dwordx4 v[{b}:{b+3}], v{vMb}, s[{sW}:{sW+3}], 0 offen offset:{off} sc1")
        else:
            e(f"    s_movk_i32 s{sT+6}, {off - off % 4096}")
            e(f"    buffer_load_dwordx4 v[{b}:{b+3}], v{vMb}, s[{sW}:{sW+3}], s{sT+6} offen offset:{off % 4096} sc1")
    e(f"    s_sub_u32 s{sCnt}, s{sCnt}, 1")
    e(f"    s_cmp_le_i32 s{sCnt}, 0")
    e("    s_cbranch_scc1 L_got")
    for p in range(1, NSPLIT):
        b = vRing + 4 * p
        e(f"    s_waitcnt vmcnt({NSPLIT-1-p})")
        if p == 1:
            e(f"    v_max_u32 v{vT0}, v{b}, v{b+1}")
        else:
            e(f"    v_max3_u32 v{vT0}, v{vT0}, v{b}, v{b+1}")
        e(f"    v_max3_u32 v{vT0}, v{vT0}, v{b+2}, v{b+3}")
    e(f"    v_cmp_eq_u32 vcc, -1, v{vT0}")
    e("    s_cbranch_vccnz L_poll")
    e("L_got:")
    e("    s_waitcnt vmcnt(0)")
    def blk(p):
        return vAcc if p == 0 else vRing + 4 * p
    e(f"    v_max_f32 v{vM}, v{blk(0)+1}, v{blk(1)+1}")
    for p in range(2, NSPLIT, 2):
        e(f"    v_max3_f32 v{vM}, v{vM}, v{blk(p)+1}, v{blk(p+1)+1}")
    for p in range(NSPLIT):
        e(f"    v_sub_f32 v{vS+p}, v{blk(p)+1}, v{vM}")
    for p in range(NSPLIT):
        e(f"    v_exp_f32 v{vS+p}, v{vS+p}")
    e("    s_nop 0")
    e(f"    v_mul_f32 v{vL}, v{vS}, v{blk(0)}")
    for p in range(1, NSPLIT):
        e(f"    v_fmac_f32 v{vL}, v{vS+p}, v{blk(p)}")
    e(f"    v_rcp_f32 v{vL}, v{vL}")
    e("    s_nop 0")
    for p in range(NSPLIT):
        e(f"    v_mul_f32 v{vS+p}, v{vS+p}, v{vL}")
    e("    s_nop 0")
    for p in range(NSPLIT):
        e(f"    v_readlane_b32 s{sOff0+p}, v{vS+p}, 32")
    e(f"    v_and_b32 v{vT0}, 15, v{vLane}")
    e(f"    v_lshrrev_b32 v{vT1}, 4, v{vLane}")
    e(f"    v_lshlrev_b32 v{vT0}, 4, v{vT0}")
    e(f"    v_lshl_add_u32 v{vT0}, v{vT1}, 3, v{vT0}")
    for r in range(4):
        e(f"    v_mul_f32 v{vAcc+r}, s{sOff0}, v{vAcc+r}")
    for p in range(1, NSPLIT):
        for r in range(4):
            e(f"    v_fmac_f32 v{vAcc+r}, s{sOff0+p}, v{blk(p)+r}")
    e(f"    v_cvt_pk_bf16_f32 v{vAcc}, v{vAcc}, v{vAcc+1}")
    e(f"    v_cvt_pk_bf16_f32 v{vAcc+1}, v{vAcc+2}, v{vAcc+3}")
    e("    s_mov_b32 exec_hi, 0")
    e(f"    buffer_store_dwordx2 v[{vAcc}:{vAcc+1}], v{vT0}, s[{sO}:{sO+3}], s{sT} offen")
    e("L_end:")
    e("    s_endpgm")
    nvg = (nv + 3) // 4 * 4
    e('.section .rodata,"a"')
    e(".p2align 6")
    e(f".amdhsa_kernel {NAME}")
    e(f"  .amdhsa_next_free_vgpr {nvg}")
    e(f"  .amdhsa_next_free_sgpr {max(nsg, sOff0 + NSPLIT)}")
    e(f"  .amdhsa_accum_offset {nvg}")
    e("  .amdhsa_group_segment_fixed_size 0")
    e("  .amdhsa_kernarg_size 48")
    e("  .amdhsa_user_sgpr_count 2")
    e("  .amdhsa_user_sgpr_kernarg_segment_ptr 1")
    e("  .amdhsa_system_sgpr_workgroup_id_x 1")
    e(".end_amdhsa_kernel")
    return "\n".join(o) + "\n"

if __name__ == "__main__":
    out = sys.argv[1]
    kw = {}
    for a in sys.argv[2:]:
        k, v = a.split("=")
        try:
            v = int(v)
        except ValueError:
            pass
        kw[k] = v
    open(out, "w").write(gen(**kw))
```

```python
import sys, math

HDR = """; Kernarg layout for this problem (48 bytes, ptrs only, base s[0:1]):
"""
NAME = "standalone__mha_softmax__decode_kernel"

def gen(NSPLIT=4, NW=8, R=48, pol="nt", layout="il1k", G=4, latebar=8, stamps=False, rot=0, spin=0):
    NWG = 64 * NSPLIT
    KW = 4096 // NSPLIT // NW
    NL = KW // 4
    R = min(R, 2 * NL)
    assert R <= 60
    SPLIT_BYTES = (1 << 20) // NSPLIT
    o = []
    e = o.append
    sK, sV, sQ, sO, sD, sW = 4, 8, 12, 16, 20, 24
    sHead, sSplit, sWave, sC = 28, 29, 30, 31
    sT = 32
    sOff0 = 48
    vTid = 0
    vOff = 1
    vLane = 2
    vM = 3
    vL = 4
    vF = 5
    vT0 = 6
    vT1 = 7
    vQ = 8
    vMask = 12
    vAcc = 16
    vA = 20
    vMb = 28
    vFlag = 29
    vS = 32
    vRing = vS + ((NL + 3) // 4) * 4
    nv = vRing + 4 * R
    nv = max(nv, vRing + 4 * max(NW, NSPLIT))
    assert nv <= 256, nv
    if layout == "il1k":
        offs = [i * NW * 1024 for i in range(NL)]
    elif layout == "il4k":
        offs = [(i // 4) * NW * 4096 + (i % 4) * 1024 for i in range(NL)]
    elif layout == "contig":
        offs = [i * 1024 for i in range(NL)]
    soffs = sorted(set(x - x % 4096 for x in offs))
    sreg = {}
    n = sOff0
    for x in soffs:
        if x == 0:
            sreg[x] = "0"
        else:
            sreg[x] = f"s{n}"
            n += 1
    nsg = n
    assert nsg <= 100
    lds_bytes = NW * 1024 + 64
    LDS_M = NW * 1024

    def load(nn):
        srd = sK if nn < NL else sV
        i = nn % NL
        slot = vRing + 4 * (nn % R)
        x = offs[i]
        imm = x % 4096
        e(f"    buffer_load_dwordx4 v[{slot}:{slot+3}], v{vOff}, s[{srd}:{srd+3}], {sreg[x - imm]} offen offset:{imm} {pol}".rstrip())

    e(HDR + f"; @launch grid=({NWG},1,1) block=({NW*64},1,1) lds={lds_bytes}")
    e('.amdgcn_target "amdgcn-amd-amdhsa--gfx950"')
    e(".text")
    e(f".globl {NAME}")
    e(".p2align 8")
    e(f".type {NAME},@function")
    e(f"{NAME}:")
    e(f"    s_cmp_ge_u32 s2, {NWG}")
    e("    s_cbranch_scc1 L_end")
    if spin:
        e("    s_memrealtime s[98:99]")
    e(f"    s_load_dwordx2 s[{sK}:{sK+1}], s[0:1], 8")
    e(f"    s_load_dwordx2 s[{sQ}:{sQ+1}], s[0:1], 0")
    e(f"    s_load_dwordx2 s[{sV}:{sV+1}], s[0:1], 16")
    e(f"    s_load_dwordx2 s[{sO}:{sO+1}], s[0:1], 24")
    e(f"    s_load_dwordx2 s[{sD}:{sD+1}], s[0:1], 32")
    e(f"    s_load_dwordx2 s[{sW}:{sW+1}], s[0:1], 40")
    for r, sz in ((sK, 1 << 26), (sV, 1 << 26), (sQ, 16384), (sO, 16384), (sD, 256), (sW, 1 << 28)):
        e(f"    s_mov_b32 s{r+2}, {hex(sz)}")
        e(f"    s_mov_b32 s{r+3}, 0x00020000")
    lg = int(math.log2(NSPLIT))
    e(f"    s_lshr_b32 s{sHead}, s2, {lg}")
    e(f"    s_and_b32 s{sSplit}, s2, {NSPLIT-1}")
    e(f"    s_lshl_b32 s3, s2, {20-lg}")
    e(f"    v_and_b32 v{vLane}, 63, v0")
    e(f"    v_lshrrev_b32 v{vT0}, 6, v0")
    if layout == "il1k":
        e(f"    v_lshl_add_u32 v{vOff}, v0, 4, s3")
    else:
        wsh = 12 if layout == "il4k" else int(math.log2(NL * 1024))
        e(f"    v_lshl_add_u32 v{vOff}, v{vLane}, 4, s3")
        e(f"    v_lshl_add_u32 v{vOff}, v{vT0}, {wsh}, v{vOff}")
    e(f"    v_readfirstlane_b32 s{sWave}, v{vT0}")
    e(f"    s_lshl_b32 s{sT}, s{sHead}, 8")
    e(f"    v_and_b32 v{vT1}, 15, v0")
    e(f"    v_lshl_add_u32 v{vT1}, v{vT1}, 4, s{sT}")
    e(f"    s_lshl_b32 s{sT+1}, s2, 10")
    e(f"    v_lshl_add_u32 v{vMb}, v{vLane}, 4, s{sT+1}")
    for x in soffs:
        if x:
            e(f"    s_mov_b32 {sreg[x]}, {hex(x)}")
    for r in range(4):
        e(f"    v_mov_b32 v{vAcc+r}, -1")
    c = math.log2(math.e) / math.sqrt(128.0)
    import struct
    cbits = struct.unpack("<I", struct.pack("<f", c))[0]
    e(f"    s_mov_b32 s{sC}, {hex(cbits)}")
    sRole = sT + 2
    e(f"    s_cmp_eq_u32 s{sSplit}, 0")
    e(f"    s_cselect_b32 s{sRole}, 2, 1")
    e(f"    s_cmp_eq_u32 s{sWave}, 0")
    e(f"    s_cselect_b32 s{sRole}, s{sRole}, 0")
    e("    s_waitcnt lgkmcnt(0)")
    e(f"    s_cmp_eq_u32 s{sRole}, 1")
    e("    s_cbranch_scc0 L_noclear")
    e(f"    buffer_store_dwordx4 v[{vAcc}:{vAcc+3}], v{vMb}, s[{sW}:{sW+3}], 0 offen sc1")
    e("L_noclear:")
    e(f"    buffer_load_dwordx4 v[{vQ}:{vQ+3}], v{vT1}, s[{sQ}:{sQ+3}], 0 offen")
    for nn in range(R):
        load(nn)
    e(f"    v_and_b32 v{vT0}, 1, v0")
    e(f"    v_lshlrev_b32 v{vT0}, 4, v{vT0}")
    e(f"    v_mov_b32 v{vT1}, 0xffff")
    e(f"    v_lshlrev_b32 v{vT0}, v{vT0}, v{vT1}")
    e(f"    v_bfe_u32 v{vT1}, v0, 1, 3")
    for r in range(4):
        e(f"    v_cmp_eq_u32 vcc, {r}, v{vT1}")
        e("    s_nop 1")
        e(f"    v_cndmask_b32 v{vMask+r}, 0, v{vT0}, vcc")
    issued = R
    total = 2 * NL
    first = True
    for g0 in range(0, NL, G):
        grp = list(range(g0, min(NL, g0 + G)))
        last = grp[-1]
        e(f"    s_waitcnt vmcnt({issued - 1 - last})")
        if first:
            first = False
            e(f"    s_cmp_eq_u32 s{sRole}, 1")
            e("    s_cbranch_scc0 L_noflag")
            e(f"    s_lshl_b32 s{sT+3}, s{sHead}, 2")
            e(f"    v_mov_b32 v{vT0}, s{sT+3}")
            e(f"    v_mov_b32 v{vT1}, 1")
            e("    s_mov_b64 exec, 1")
            e(f"    buffer_atomic_add v{vT1}, v{vT0}, s[{sD}:{sD+3}], 0 offen sc1")
            e("    s_mov_b64 exec, -1")
            e("L_noflag:")
        for r in range(4):
            for i in grp:
                slot = vRing + 4 * (i % R)
                src2 = "0" if r == 0 else f"v{vS+i}"
                e(f"    v_dot2_f32_bf16 v{vS+i}, v{slot+r}, v{vQ+r}, {src2}")
        for i in grp:
            if issued < total:
                load(issued); issued += 1
        if len(grp) < 4:
            e(f"    s_nop {3 - len(grp)}")
        for sh in (8, 4, 2, 1):
            for i in grp:
                e(f"    v_add_f32_dpp v{vS+i}, v{vS+i}, v{vS+i} row_ror:{sh} row_mask:0xf bank_mask:0xf")
            if len(grp) < 3:
                e(f"    s_nop {2 - len(grp)}")
    e(f"    v_max_f32 v{vM}, v{vS}, v{vS+1}")
    for i in range(2, NL, 2):
        e(f"    v_max3_f32 v{vM}, v{vM}, v{vS+i}, v{vS+i+1}")
    e(f"    v_mov_b32 v{vT0}, v{vM}")
    e("    s_nop 1")
    e(f"    v_permlane32_swap_b32 v{vM}, v{vT0}")
    e("    s_nop 1")
    e(f"    v_max_f32 v{vM}, v{vM}, v{vT0}")
    e(f"    v_mov_b32 v{vT0}, v{vM}")
    e("    s_nop 1")
    e(f"    v_permlane16_swap_b32 v{vM}, v{vT0}")
    e("    s_nop 1")
    e(f"    v_max_f32 v{vM}, v{vM}, v{vT0}")
    e(f"    v_mul_f32 v{vM}, s{sC}, v{vM}")
    e(f"    s_lshl_b32 s{sT+3}, s{sWave}, 2")
    e(f"    v_mov_b32 v{vT0}, s{sT+3}")
    e(f"    ds_write_b32 v{vT0}, v{vM} offset:{LDS_M}")
    for i in range(NL):
        e(f"    v_fma_f32 v{vS+i}, v{vS+i}, s{sC}, -v{vM}")
    for i in range(NL):
        e(f"    v_exp_f32 v{vS+i}, v{vS+i}")
    e(f"    v_add_f32 v{vL}, v{vS}, v{vS+1}")
    e(f"    v_add_f32 v{vT1}, v{vS+2}, v{vS+3}")
    for i in range(4, NL, 2):
        e(f"    v_add_f32 v{vL}, v{vL}, v{vS+i}")
        e(f"    v_add_f32 v{vT1}, v{vT1}, v{vS+i+1}")
    e(f"    v_add_f32 v{vL}, v{vL}, v{vT1}")
    for i in range(NL):
        e(f"    v_cvt_pk_bf16_f32 v{vS+i}, v{vS+i}, v{vS+i}")
    e(f"    v_mov_b32 v{vT0}, v{vL}")
    e("    s_nop 1")
    e(f"    v_permlane32_swap_b32 v{vL}, v{vT0}")
    e("    s_nop 1")
    e(f"    v_add_f32 v{vL}, v{vL}, v{vT0}")
    e(f"    v_mov_b32 v{vT0}, v{vL}")
    e("    s_nop 1")
    e(f"    v_permlane16_swap_b32 v{vL}, v{vT0}")
    e("    s_nop 1")
    e(f"    v_add_f32 v{vL}, v{vL}, v{vT0}")
    e(f"    v_cmp_le_u32 vcc, 32, v{vLane}")
    e(f"    v_mov_b32 v{vAcc+1}, 0")
    e(f"    v_mov_b32 v{vAcc+2}, 0")
    e(f"    v_mov_b32 v{vAcc+3}, 0")
    e(f"    v_cndmask_b32 v{vAcc}, 0, v{vL}, vcc")
    barpos = max(0, NL - latebar)
    for i in range(NL):
        nn = NL + i
        a = vA + 4 * (i % 2)
        slot = vRing + 4 * (nn % R)
        if i == barpos:
            e("    s_waitcnt lgkmcnt(0)")
            e("    s_barrier")
            e(f"    v_mov_b32 v{vT0}, 0")
            assert barpos >= NW or NW <= 8
            tmp = vS if barpos >= NW else None
            assert tmp is not None
            for w in range(0, NW, 4):
                e(f"    ds_read_b128 v[{tmp+w}:{tmp+w+3}], v{vT0} offset:{LDS_M + 4*w}")
            e(f"    s_cmp_eq_u32 s{sRole}, 2")
            e("    s_cbranch_scc0 L_noflagld")
            e(f"    s_lshl_b32 s{sT+3}, s{sHead}, 2")
            e(f"    buffer_load_dword v{vFlag}, v{vT0}, s[{sD}:{sD+3}], s{sT+3} offen sc1")
            e("L_noflagld:")
            e("    s_waitcnt lgkmcnt(0)")
            e(f"    v_max_f32 v{vT1}, v{tmp}, v{tmp+1}")
            for w in range(2, NW, 2):
                e(f"    v_max3_f32 v{vT1}, v{vT1}, v{tmp+w}, v{tmp+w+1}")
            e(f"    v_sub_f32 v{vF}, v{vM}, v{vT1}")
            e(f"    v_exp_f32 v{vF}, v{vF}")
            e(f"    v_mov_b32 v{vM}, v{vT1}")
        for r in range(4):
            e(f"    v_and_b32 v{a+r}, v{vS+i}, v{vMask+r}")
        e(f"    s_waitcnt vmcnt({issued - 1 - nn})")
        e("    s_nop 0")
        e(f"    v_mfma_f32_16x16x32_bf16 v[{vAcc}:{vAcc+3}], v[{a}:{a+3}], v[{slot}:{slot+3}], v[{vAcc}:{vAcc+3}]")
        if issued < total:
            load(issued); issued += 1
    e(f"    v_lshlrev_b32 v{vT0}, 4, v0")
    e(f"    v_lshlrev_b32 v{vT1}, 4, v{vLane}")
    e("    s_nop 5")
    for r in range(4):
        e(f"    v_mul_f32 v{vAcc+r}, v{vF}, v{vAcc+r}")
    e(f"    ds_write_b128 v{vT0}, v[{vAcc}:{vAcc+3}]")
    e("    s_waitcnt lgkmcnt(0)")
    e("    s_barrier")
    e(f"    s_cmp_eq_u32 s{sRole}, 0")
    e("    s_cbranch_scc1 L_end")
    for w in range(1, NW):
        b = vRing + 4 * w
        e(f"    ds_read_b128 v[{b}:{b+3}], v{vT1} offset:{w*1024}")
    e("    s_mov_b32 exec_lo, -1")
    e("    s_mov_b32 exec_hi, 1")
    e(f"    v_cmp_le_u32 vcc, 32, v{vLane}")
    for w in range(1, NW):
        b = vRing + 4 * w
        e(f"    s_waitcnt lgkmcnt({NW-1-w})")
        e(f"    v_pk_add_f32 v[{vAcc}:{vAcc+1}], v[{vAcc}:{vAcc+1}], v[{b}:{b+1}]")
        e(f"    v_pk_add_f32 v[{vAcc+2}:{vAcc+3}], v[{vAcc+2}:{vAcc+3}], v[{b+2}:{b+3}]")
    e(f"    v_cndmask_b32 v{vAcc+1}, v{vAcc+1}, v{vM}, vcc")
    e(f"    s_cmp_eq_u32 s{sRole}, 2")
    e("    s_cbranch_scc1 L_consumer")
    for r in range(4):
        e(f"    v_min_u32 v{vAcc+r}, -2, v{vAcc+r}")
    e(f"    buffer_store_dwordx4 v[{vAcc}:{vAcc+3}], v{vMb}, s[{sW}:{sW+3}], 0 offen sc1")
    e("    s_endpgm")
    e("L_consumer:")
    sCnt = sT + 4
    e(f"    s_mov_b32 s{sCnt}, 0x100000")
    e(f"    v_mov_b32 v{vT0}, 0")
    e("L_flagspin:")
    e(f"    v_readfirstlane_b32 s{sT+5}, v{vFlag}")
    e(f"    s_cmp_ge_u32 s{sT+5}, {NSPLIT-1}")
    e("    s_cbranch_scc1 L_poll")
    e(f"    buffer_load_dword v{vFlag}, v{vT0}, s[{sD}:{sD+3}], s{sT+3} offen sc1")
    e(f"    s_sub_u32 s{sCnt}, s{sCnt}, 1")
    e(f"    s_cmp_eq_u32 s{sCnt}, 0")
    e("    s_waitcnt vmcnt(0)")
    e("    s_cbranch_scc0 L_flagspin")
    e("L_poll:")
    for p in range(1, NSPLIT):
        b = vRing + 4 * p
        off = p * 1024
        if off < 4096:
            e(f"    buffer_load_dwordx4 v[{b}:{b+3}], v{vMb}, s[{sW}:{sW+3}], 0 offen offset:{off} sc1")
        else:
            e(f"    s_movk_i32 s{sT+6}, {off - off % 4096}")
            e(f"    buffer_load_dwordx4 v[{b}:{b+3}], v{vMb}, s[{sW}:{sW+3}], s{sT+6} offen offset:{off % 4096} sc1")
    e(f"    s_sub_u32 s{sCnt}, s{sCnt}, 1")
    e(f"    s_cmp_le_i32 s{sCnt}, 0")
    e("    s_cbranch_scc1 L_got")
    for p in range(1, NSPLIT):
        b = vRing + 4 * p
        e(f"    s_waitcnt vmcnt({NSPLIT-1-p})")
        if p == 1:
            e(f"    v_max_u32 v{vT0}, v{b}, v{b+1}")
        else:
            e(f"    v_max3_u32 v{vT0}, v{vT0}, v{b}, v{b+1}")
        e(f"    v_max3_u32 v{vT0}, v{vT0}, v{b+2}, v{b+3}")
    e(f"    v_cmp_eq_u32 vcc, -1, v{vT0}")
    e("    s_cbranch_vccnz L_poll")
    e("L_got:")
    e("    s_waitcnt vmcnt(0)")
    def blk(p):
        return vAcc if p == 0 else vRing + 4 * p
    e(f"    v_max_f32 v{vM}, v{blk(0)+1}, v{blk(1)+1}")
    for p in range(2, NSPLIT, 2):
        e(f"    v_max3_f32 v{vM}, v{vM}, v{blk(p)+1}, v{blk(p+1)+1}")
    for p in range(NSPLIT):
        e(f"    v_sub_f32 v{vS+p}, v{blk(p)+1}, v{vM}")
    for p in range(NSPLIT):
        e(f"    v_exp_f32 v{vS+p}, v{vS+p}")
    e("    s_nop 0")
    e(f"    v_mul_f32 v{vL}, v{vS}, v{blk(0)}")
    for p in range(1, NSPLIT):
        e(f"    v_fmac_f32 v{vL}, v{vS+p}, v{blk(p)}")
    e(f"    v_rcp_f32 v{vL}, v{vL}")
    e("    s_nop 0")
    for p in range(NSPLIT):
        e(f"    v_mul_f32 v{vS+p}, v{vS+p}, v{vL}")
    e("    s_nop 0")
    for p in range(NSPLIT):
        e(f"    v_readlane_b32 s{sOff0+p}, v{vS+p}, 32")
    e(f"    v_and_b32 v{vT0}, 15, v{vLane}")
    e(f"    v_lshrrev_b32 v{vT1}, 4, v{vLane}")
    e(f"    v_lshlrev_b32 v{vT0}, 4, v{vT0}")
    e(f"    v_lshl_add_u32 v{vT0}, v{vT1}, 3, v{vT0}")
    for r in range(4):
        e(f"    v_mul_f32 v{vAcc+r}, s{sOff0}, v{vAcc+r}")
    for p in range(1, NSPLIT):
        for r in range(4):
            e(f"    v_fmac_f32 v{vAcc+r}, s{sOff0+p}, v{blk(p)+r}")
    e(f"    v_cvt_pk_bf16_f32 v{vAcc}, v{vAcc}, v{vAcc+1}")
    e(f"    v_cvt_pk_bf16_f32 v{vAcc+1}, v{vAcc+2}, v{vAcc+3}")
    e("    s_mov_b32 exec_hi, 0")
    e(f"    buffer_store_dwordx2 v[{vAcc}:{vAcc+1}], v{vT0}, s[{sO}:{sO+3}], s{sT} offen")
    if spin:
        e("L_spin:")
        e("    s_memrealtime s[96:97]")
        e("    s_waitcnt lgkmcnt(0)")
        e("    s_sub_u32 s96, s96, s98")
        e(f"    s_cmp_lt_u32 s96, {spin}")
        e("    s_cbranch_scc1 L_spin")
        nsg = 100
    e("L_end:")
    e("    s_endpgm")
    nvg = (nv + 3) // 4 * 4
    e('.section .rodata,"a"')
    e(".p2align 6")
    e(f".amdhsa_kernel {NAME}")
    e(f"  .amdhsa_next_free_vgpr {nvg}")
    e(f"  .amdhsa_next_free_sgpr {max(nsg, sOff0 + NSPLIT)}")
    e(f"  .amdhsa_accum_offset {nvg}")
    e("  .amdhsa_group_segment_fixed_size 0")
    e("  .amdhsa_kernarg_size 48")
    e("  .amdhsa_user_sgpr_count 2")
    e("  .amdhsa_user_sgpr_kernarg_segment_ptr 1")
    e("  .amdhsa_system_sgpr_workgroup_id_x 1")
    e(".end_amdhsa_kernel")
    return "\n".join(o) + "\n"

if __name__ == "__main__":
    out = sys.argv[1]
    kw = {}
    for a in sys.argv[2:]:
        k, v = a.split("=")
        try:
            v = int(v)
        except ValueError:
            pass
        kw[k] = v
    open(out, "w").write(gen(**kw))
```

```python
import sys, math, struct

HDR = """; Kernarg layout for this problem (48 bytes, ptrs only, base s[0:1]):
"""
NAME = "standalone__mha_softmax__decode_kernel"

def gen(NW=4, U=2, DEP=4, pol="nt", LA=4, latebar=16, stamps=0, rot=1, spin=0, cspread=1, npoll=1):
    NSPLIT = 4
    NWG = 64 * NSPLIT
    NL = 1024 // NW // 4
    NU = NL // U
    R = U * DEP
    RND = U * NW * 1024
    o = []
    e = o.append
    sK, sV, sQ, sO, sD, sW = 4, 8, 12, 16, 20, 24
    sHead, sSplit, sWave, sC = 28, 29, 30, 31
    sOutOff, sRole, sOff, sFlagOff, sCnt, sT = 32, 33, 34, 35, 36, 37
    sG = 40
    nsg = 48
    vOff, vLane, vM, vL, vF, vT0, vT1 = 1, 2, 3, 4, 5, 6, 7
    vQ, vMask, vAcc, vA = 8, 12, 16, 20
    vMb, vFlag, vL2, vOut = 28, 29, 30, 31
    vS = 32
    vRing = vS + NL
    nv = max(vRing + 4 * R, vRing + 4 * 4)
    assert nv <= 256
    lds_bytes = NW * 1024 + 64
    LDS_M = NW * 1024

    def stamp(j):
        if stamps:
            e(f"    s_memrealtime s[{84+2*j}:{85+2*j}]")

    def issue(un):
        srd = sK if un < NU else sV
        for i in range(U):
            slot = vRing + 4 * ((un % DEP) * U + i)
            e(f"    buffer_load_dwordx4 v[{slot}:{slot+3}], v{vOff}, s[{srd}:{srd+3}], s{sOff} offen offset:{i*1024} {pol}".rstrip())
        if un + 1 < 2 * NU:
            e(f"    s_add_u32 s{sOff}, s{sOff}, {RND}")
            e(f"    s_and_b32 s{sOff}, s{sOff}, 0x3ffff")

    e(HDR + f"; @launch grid=({NWG},1,1) block=({NW*64},1,1) lds={lds_bytes}")
    e('.amdgcn_target "amdgcn-amd-amdhsa--gfx950"')
    e(".text")
    e(f".globl {NAME}")
    e(".p2align 8")
    e(f".type {NAME},@function")
    e(f"{NAME}:")
    if spin:
        e("    s_memrealtime s[98:99]")
    stamp(0)
    e(f"    s_load_dwordx2 s[{sK}:{sK+1}], s[0:1], 8")
    e(f"    s_load_dwordx2 s[{sQ}:{sQ+1}], s[0:1], 0")
    e(f"    s_load_dwordx2 s[{sV}:{sV+1}], s[0:1], 16")
    e(f"    s_load_dwordx2 s[{sO}:{sO+1}], s[0:1], 24")
    e(f"    s_load_dwordx2 s[{sD}:{sD+1}], s[0:1], 32")
    e(f"    s_load_dwordx2 s[{sW}:{sW+1}], s[0:1], 40")
    e(f"    s_cmp_ge_u32 s2, {NWG}")
    e("    s_cbranch_scc1 L_end")
    if stamps:
        e("    s_mov_b32 s94, 0")
    for r, sz in ((sK, 1 << 26), (sV, 1 << 26), (sQ, 16384), (sO, 16384), (sD, 256), (sW, 1 << 28)):
        e(f"    s_mov_b32 s{r+2}, {hex(sz)}")
        e(f"    s_mov_b32 s{r+3}, 0x00020000")
    e(f"    s_lshr_b32 s{sHead}, s2, 2")
    e(f"    s_and_b32 s{sSplit}, s2, 3")
    e(f"    s_lshl_b32 s3, s2, 18")
    e(f"    v_and_b32 v{vLane}, 63, v0")
    e(f"    v_lshrrev_b32 v{vT0}, 6, v0")
    e(f"    v_lshl_add_u32 v{vOff}, v{vLane}, 4, s3")
    e(f"    v_lshl_add_u32 v{vOff}, v{vT0}, {int(math.log2(U*1024))}, v{vOff}")
    e(f"    v_readfirstlane_b32 s{sWave}, v{vT0}")
    e(f"    s_lshl_b32 s{sOutOff}, s{sHead}, 8")
    e(f"    v_and_b32 v{vT1}, 15, v0")
    e(f"    v_lshl_add_u32 v{vT1}, v{vT1}, 4, s{sOutOff}")
    if rot:
        e(f"    s_mul_i32 s{sOff}, s2, 0x9E3779B1")
        e(f"    s_lshr_b32 s{sOff}, s{sOff}, 20")
        e(f"    s_mul_i32 s{sOff}, s{sOff}, {RND}")
        e(f"    s_and_b32 s{sOff}, s{sOff}, 0x3ffff")
    else:
        e(f"    s_mov_b32 s{sOff}, 0")
    if cspread:
        e(f"    s_lshr_b32 s{sT}, s{sHead}, 1")
        e(f"    s_sub_u32 s{sSplit}, s{sSplit}, s{sT}")
        e(f"    s_and_b32 s{sSplit}, s{sSplit}, 3")
    e(f"    s_lshl_b32 s{sT}, s{sHead}, 2")
    e(f"    s_mov_b32 s{sFlagOff}, s{sT}")
    e(f"    s_add_u32 s{sT}, s{sT}, s{sSplit}")
    e(f"    s_lshl_b32 s{sT}, s{sT}, 10")
    e(f"    v_lshl_add_u32 v{vMb}, v{vLane}, 4, s{sT}")
    for r in range(4):
        e(f"    v_mov_b32 v{vAcc+r}, -1")
    c = math.log2(math.e) / math.sqrt(128.0)
    cbits = struct.unpack("<I", struct.pack("<f", c))[0]
    e(f"    s_mov_b32 s{sC}, {hex(cbits)}")
    e(f"    s_cmp_eq_u32 s{sSplit}, 0")
    e(f"    s_cselect_b32 s{sRole}, 2, 1")
    e(f"    s_cmp_eq_u32 s{sWave}, 0")
    e(f"    s_cselect_b32 s{sRole}, s{sRole}, 0")
    e("    s_waitcnt lgkmcnt(0)")
    stamp(1)
    issue(0)
    e(f"    buffer_load_dwordx4 v[{vQ}:{vQ+3}], v{vT1}, s[{sQ}:{sQ+3}], 0 offen")
    for un in range(1, DEP):
        issue(un)
    e(f"    s_cmp_eq_u32 s{sRole}, 1")
    e("    s_cbranch_scc0 L_noclear")
    e(f"    buffer_store_dwordx4 v[{vAcc}:{vAcc+3}], v{vMb}, s[{sW}:{sW+3}], 0 offen sc1")
    e("L_noclear:")
    e(f"    v_and_b32 v{vT0}, 1, v0")
    e(f"    v_lshlrev_b32 v{vT0}, 4, v{vT0}")
    e(f"    v_mov_b32 v{vT1}, 0xffff")
    e(f"    v_lshlrev_b32 v{vT0}, v{vT0}, v{vT1}")
    e(f"    v_bfe_u32 v{vT1}, v0, 1, 3")
    for r in range(4):
        e(f"    v_cmp_eq_u32 vcc, {r}, v{vT1}")
        e("    s_nop 1")
        e(f"    v_cndmask_b32 v{vMask+r}, 0, v{vT0}, vcc")
    e(f"    v_and_b32 v{vT0}, 15, v{vLane}")
    e(f"    v_lshrrev_b32 v{vT1}, 4, v{vLane}")
    e(f"    v_lshlrev_b32 v{vT0}, 4, v{vT0}")
    e(f"    v_lshl_add_u32 v{vOut}, v{vT1}, 3, v{vT0}")
    e(f"    v_mov_b32 v{vM}, 0xff800000")
    issued = DEP
    total = 2 * NU
    def dpp_steps(regs):
        for sh in (8, 4, 2, 1):
            for r in regs:
                e(f"    v_add_f32_dpp v{r}, v{r}, v{r} row_ror:{sh} row_mask:0xf bank_mask:0xf")
            if len(regs) < 3:
                e(f"    s_nop {2 - len(regs)}")
    G = max(1, 4 // U)
    pend = []
    flagged = False
    for un in range(NU):
        e(f"    s_waitcnt vmcnt({(issued - 1 - un) * U})")
        if un == 0:
            stamp(2)
        if un == DEP and not flagged:
            flagged = True
            e(f"    s_cmp_eq_u32 s{sRole}, 1")
            e("    s_cbranch_scc0 L_noflag")
            e(f"    v_mov_b32 v{vT0}, s{sFlagOff}")
            e(f"    v_mov_b32 v{vT1}, 1")
            e("    s_mov_b64 exec, 1")
            e(f"    buffer_atomic_add v{vT1}, v{vT0}, s[{sD}:{sD+3}], 0 offen sc1")
            e("    s_mov_b64 exec, -1")
            e("L_noflag:")
        for r in range(4):
            for i in range(U):
                slot = vRing + 4 * ((un % DEP) * U + i)
                d = vS + un * U + i
                src2 = "0" if r == 0 else f"v{d}"
                e(f"    v_dot2_f32_bf16 v{d}, v{slot+r}, v{vQ+r}, {src2}")
        if issued < total:
            issue(issued); issued += 1
        pend += [vS + un * U + i for i in range(U)]
        if len(pend) >= 4:
            e("    s_nop 0")
            dpp_steps(pend)
            for j in range(0, len(pend), 2):
                e(f"    v_max3_f32 v{vM}, v{vM}, v{pend[j]}, v{pend[j+1]}")
            pend = []
    assert not pend
    stamp(3)
    e(f"    v_mov_b32 v{vT0}, v{vM}")
    e("    s_nop 1")
    e(f"    v_permlane32_swap_b32 v{vM}, v{vT0}")
    e("    s_nop 1")
    e(f"    v_max_f32 v{vM}, v{vM}, v{vT0}")
    e(f"    v_mov_b32 v{vT0}, v{vM}")
    e("    s_nop 1")
    e(f"    v_permlane16_swap_b32 v{vM}, v{vT0}")
    e("    s_nop 1")
    e(f"    v_max_f32 v{vM}, v{vM}, v{vT0}")
    e(f"    v_mul_f32 v{vM}, s{sC}, v{vM}")
    e(f"    s_lshl_b32 s{sT}, s{sWave}, 2")
    e(f"    v_mov_b32 v{vT0}, s{sT}")
    e(f"    ds_write_b32 v{vT0}, v{vM} offset:{LDS_M}")
    for r in range(4):
        e(f"    v_mov_b32 v{vAcc+r}, 0")
    e(f"    v_mov_b32 v{vL}, 0")
    e(f"    v_mov_b32 v{vL2}, 0")
    def pcalc(idx):
        idx = [i for i in idx if i < NL]
        for i in idx:
            e(f"    v_fma_f32 v{vS+i}, v{vS+i}, s{sC}, -v{vM}")
        for i in idx:
            e(f"    v_exp_f32 v{vS+i}, v{vS+i}")
        if len(idx) == 1:
            e("    s_nop 0")
        for i in idx:
            l = vL if i % 2 == 0 else vL2
            e(f"    v_add_f32 v{l}, v{l}, v{vS+i}")
        for i in idx:
            e(f"    v_cvt_pk_bf16_f32 v{vS+i}, v{vS+i}, v{vS+i}")
    done_p = 0
    pcalc(range(0, U)); done_p = U
    fin_done = False
    for u in range(NU):
        un = NU + u
        for i in range(U):
            a = vA + 4 * ((u * U + i) % 2)
            slot = vRing + 4 * ((un % DEP) * U + i)
            for r in range(4):
                e(f"    v_and_b32 v{a+r}, v{vS+u*U+i}, v{vMask+r}")
            if issued >= total:
                e(f"    s_waitcnt vmcnt({(issued - un) * U - 1 - i})")
                e("    s_nop 0")
            elif i == 0:
                e(f"    s_waitcnt vmcnt({(issued - 1 - un) * U})")
                e("    s_nop 0")
            else:
                e("    s_nop 1")
            e(f"    v_mfma_f32_16x16x32_bf16 v[{vAcc}:{vAcc+3}], v[{a}:{a+3}], v[{slot}:{slot+3}], v[{vAcc}:{vAcc+3}]")
        if issued < total:
            issue(issued); issued += 1
        if done_p < NL:
            pcalc(range(done_p, done_p + 2 * U)); done_p += 2 * U
        elif not fin_done:
            fin_done = True
            e(f"    v_add_f32 v{vL}, v{vL}, v{vL2}")
            e(f"    v_mov_b32 v{vT0}, v{vL}")
            e("    s_nop 1")
            e(f"    v_permlane32_swap_b32 v{vL}, v{vT0}")
            e("    s_nop 1")
            e(f"    v_add_f32 v{vL}, v{vL}, v{vT0}")
            e(f"    v_mov_b32 v{vT0}, v{vL}")
            e("    s_nop 1")
            e(f"    v_permlane16_swap_b32 v{vL}, v{vT0}")
            e("    s_nop 1")
            e(f"    v_add_f32 v{vL}, v{vL}, v{vT0}")
            e("    s_waitcnt lgkmcnt(0)")
            e("    s_barrier")
            e(f"    v_mov_b32 v{vT0}, 0")
            for w in range(0, NW, 4):
                e(f"    ds_read_b128 v[{vS+w}:{vS+w+3}], v{vT0} offset:{LDS_M + 4*w}")
            e(f"    s_cmp_eq_u32 s{sRole}, 2")
            e("    s_cbranch_scc0 L_noflagld")
            e(f"    buffer_load_dword v{vFlag}, v{vT0}, s[{sD}:{sD+3}], s{sFlagOff} offen sc1")
            e("L_noflagld:")
            e(f"    v_cmp_le_u32 vcc, 32, v{vLane}")
            e("    s_waitcnt lgkmcnt(0)")
            if NW == 2:
                e(f"    v_max_f32 v{vT1}, v{vS}, v{vS+1}")
            else:
                e(f"    v_max_f32 v{vT1}, v{vS}, v{vS+1}")
                for w in range(2, NW, 2):
                    e(f"    v_max3_f32 v{vT1}, v{vT1}, v{vS+w}, v{vS+w+1}")
            e(f"    v_sub_f32 v{vF}, v{vM}, v{vT1}")
            e(f"    v_exp_f32 v{vF}, v{vF}")
            e(f"    v_mov_b32 v{vM}, v{vT1}")
            e(f"    v_mul_f32 v{vL}, v{vL}, v{vF}")
            e(f"    v_cndmask_b32 v{vL}, 0, v{vL}, vcc")
            e(f"    v_lshlrev_b32 v{vT0}, 4, v0")
            e(f"    v_lshlrev_b32 v{vT1}, 4, v{vLane}")
    assert fin_done
    stamp(4)
    e("    s_nop 7")
    e(f"    v_fma_f32 v{vAcc}, v{vF}, v{vAcc}, v{vL}")
    for r in range(1, 4):
        e(f"    v_mul_f32 v{vAcc+r}, v{vF}, v{vAcc+r}")
    e(f"    ds_write_b128 v{vT0}, v[{vAcc}:{vAcc+3}]")
    e("    s_waitcnt lgkmcnt(0)")
    e("    s_barrier")
    e(f"    s_cmp_eq_u32 s{sRole}, 0")
    e("    s_cbranch_scc1 L_fin")
    for w in range(1, NW):
        b = vS + 4 * w
        e(f"    ds_read_b128 v[{b}:{b+3}], v{vT1} offset:{w*1024}")
    e("    s_mov_b32 exec_lo, -1")
    e("    s_mov_b32 exec_hi, 1")
    for w in range(1, NW):
        b = vS + 4 * w
        e(f"    s_waitcnt lgkmcnt({NW-1-w})")
        e(f"    v_pk_add_f32 v[{vAcc}:{vAcc+1}], v[{vAcc}:{vAcc+1}], v[{b}:{b+1}]")
        e(f"    v_pk_add_f32 v[{vAcc+2}:{vAcc+3}], v[{vAcc+2}:{vAcc+3}], v[{b+2}:{b+3}]")
    e(f"    v_cndmask_b32 v{vAcc+1}, v{vAcc+1}, v{vM}, vcc")
    e(f"    s_cmp_eq_u32 s{sRole}, 2")
    e("    s_cbranch_scc1 L_consumer")
    for r in range(4):
        e(f"    v_min_u32 v{vAcc+r}, -2, v{vAcc+r}")
    e(f"    buffer_store_dwordx4 v[{vAcc}:{vAcc+3}], v{vMb}, s[{sW}:{sW+3}], 0 offen sc1")
    e("    s_branch L_fin" if stamps else "    s_endpgm")
    e("L_consumer:")
    e(f"    s_mov_b32 s{sCnt}, 0x100000")
    e(f"    v_mov_b32 v{vT0}, 0")
    e("L_flagspin:")
    e(f"    v_readfirstlane_b32 s{sT}, v{vFlag}")
    e(f"    s_cmp_ge_u32 s{sT}, {NSPLIT-1}")
    e("    s_cbranch_scc1 L_poll")
    e(f"    buffer_load_dword v{vFlag}, v{vT0}, s[{sD}:{sD+3}], s{sFlagOff} offen sc1")
    e(f"    s_sub_u32 s{sCnt}, s{sCnt}, 1")
    e(f"    s_cmp_eq_u32 s{sCnt}, 0")
    e("    s_waitcnt vmcnt(0)")
    e("    s_cbranch_scc0 L_flagspin")
    e("L_poll:")
    for p in range(1, NSPLIT):
        b = vRing + 4 * p
        e(f"    buffer_load_dwordx4 v[{b}:{b+3}], v{vMb}, s[{sW}:{sW+3}], 0 offen offset:{p*1024} sc1")
    e(f"    s_sub_u32 s{sCnt}, s{sCnt}, 1")
    e(f"    s_cmp_le_i32 s{sCnt}, 0")
    e("    s_cbranch_scc1 L_got")
    for p in range(1, NSPLIT):
        b = vRing + 4 * p
        e(f"    s_waitcnt vmcnt({NSPLIT-1-p})")
        if p == 1:
            e(f"    v_max_u32 v{vT0}, v{b}, v{b+1}")
        else:
            e(f"    v_max3_u32 v{vT0}, v{vT0}, v{b}, v{b+1}")
        e(f"    v_max3_u32 v{vT0}, v{vT0}, v{b+2}, v{b+3}")
    e(f"    v_cmp_eq_u32 vcc, -1, v{vT0}")
    e("    s_cbranch_vccnz L_poll")
    e("L_got:")
    e("    s_waitcnt vmcnt(0)")
    def blk(p):
        return vAcc if p == 0 else vRing + 4 * p
    e(f"    v_max_f32 v{vM}, v{blk(0)+1}, v{blk(1)+1}")
    e(f"    v_max3_f32 v{vM}, v{vM}, v{blk(2)+1}, v{blk(3)+1}")
    for p in range(NSPLIT):
        e(f"    v_sub_f32 v{vS+p}, v{blk(p)+1}, v{vM}")
    for p in range(NSPLIT):
        e(f"    v_exp_f32 v{vS+p}, v{vS+p}")
    e(f"    v_mul_f32 v{vL}, v{vS}, v{blk(0)}")
    for p in range(1, NSPLIT):
        e(f"    v_fmac_f32 v{vL}, v{vS+p}, v{blk(p)}")
    e(f"    v_rcp_f32 v{vL}, v{vL}")
    e("    s_nop 0")
    for p in range(NSPLIT):
        e(f"    v_mul_f32 v{vS+p}, v{vS+p}, v{vL}")
    for p in range(NSPLIT):
        e(f"    v_readlane_b32 s{sG+p}, v{vS+p}, 32")
    e("    s_mov_b32 exec_hi, 0")
    for r in range(4):
        e(f"    v_mul_f32 v{vAcc+r}, s{sG}, v{vAcc+r}")
    for p in range(1, NSPLIT):
        for r in range(4):
            e(f"    v_fmac_f32 v{vAcc+r}, s{sG+p}, v{blk(p)+r}")
    e(f"    v_cvt_pk_bf16_f32 v{vAcc}, v{vAcc}, v{vAcc+1}")
    e(f"    v_cvt_pk_bf16_f32 v{vAcc+1}, v{vAcc+2}, v{vAcc+3}")
    e(f"    buffer_store_dwordx2 v[{vAcc}:{vAcc+1}], v{vOut}, s[{sO}:{sO+3}], s{sOutOff} offen")
    if spin:
        e("L_spin:")
        e("    s_memrealtime s[96:97]")
        e("    s_waitcnt lgkmcnt(0)")
        e("    s_sub_u32 s96, s96, s98")
        e(f"    s_cmp_lt_u32 s96, {spin}")
        e("    s_cbranch_scc1 L_spin")
        nsg = 100
    if stamps:
        e("    s_waitcnt vmcnt(0)")
        stamp(5)
        nsg = 100
    e("L_fin:")
    if stamps:
        e("    s_mov_b64 exec, -1")
        e("    s_getreg_b32 s96, hwreg(HW_REG_XCC_ID)")
        e("    s_getreg_b32 s97, hwreg(HW_REG_HW_ID)")
        e("    s_waitcnt lgkmcnt(0)")
        for j in range(6):
            e(f"    v_mov_b32 v{vS+j}, s{84+2*j}")
        e(f"    v_mov_b32 v{vS+6}, s96")
        e(f"    v_mov_b32 v{vS+7}, s97")
        e(f"    s_mul_i32 s96, s2, {NW}")
        e(f"    s_add_u32 s96, s96, s{sWave}")
        e("    s_lshl_b32 s96, s96, 6")
        e("    s_add_u32 s96, s96, 0x100000")
        e(f"    v_mov_b32 v{vT0}, 0")
        e("    s_mov_b64 exec, 1")
        e(f"    buffer_store_dwordx4 v[{vS}:{vS+3}], v{vT0}, s[{sW}:{sW+3}], s96 offen")
        e(f"    buffer_store_dwordx4 v[{vS+4}:{vS+7}], v{vT0}, s[{sW}:{sW+3}], s96 offen offset:16")
    e("L_end:")
    e("    s_endpgm")
    nvg = (nv + 3) // 4 * 4
    e('.section .rodata,"a"')
    e(".p2align 6")
    e(f".amdhsa_kernel {NAME}")
    e(f"  .amdhsa_next_free_vgpr {nvg}")
    e(f"  .amdhsa_next_free_sgpr {nsg}")
    e(f"  .amdhsa_accum_offset {nvg}")
    e("  .amdhsa_group_segment_fixed_size 0")
    e("  .amdhsa_kernarg_size 48")
    e("  .amdhsa_user_sgpr_count 2")
    e("  .amdhsa_user_sgpr_kernarg_segment_ptr 1")
    e("  .amdhsa_system_sgpr_workgroup_id_x 1")
    e(".end_amdhsa_kernel")
    return "\n".join(o) + "\n"

if __name__ == "__main__":
    out = sys.argv[1]
    kw = {}
    for a in sys.argv[2:]:
        k, v = a.split("=")
        try:
            v = int(v)
        except ValueError:
            pass
        kw[k] = v
    open(out, "w").write(gen(**kw))
```

```python
import sys, math, struct

HDR = """; Kernarg layout for this problem (48 bytes, ptrs only, base s[0:1]):
"""
NAME = "standalone__mha_softmax__decode_kernel"

def gen(NW=4, U=2, DEP=4, pol="nt", LA=4, latebar=16, stamps=0, rot=1, spin=0, cspread=1, npoll=1, probe=-1):
    if probe >= 0: stamps = 2
    NSPLIT = 4
    NWG = 64 * NSPLIT
    NL = 1024 // NW // 4
    NU = NL // U
    R = U * DEP
    RND = U * NW * 1024
    o = []
    e = o.append
    sK, sV, sQ, sO, sD, sW = 4, 8, 12, 16, 20, 24
    sHead, sSplit, sWave, sC = 28, 29, 30, 31
    sOutOff, sRole, sOff, sFlagOff, sCnt, sT = 32, 33, 34, 35, 36, 37
    sG = 40
    nsg = 48
    vOff, vLane, vM, vL, vF, vT0, vT1 = 1, 2, 3, 4, 5, 6, 7
    vQ, vMask, vAcc, vA = 8, 12, 16, 20
    vMb, vFlag, vL2, vOut = 28, 29, 30, 31
    vS = 32
    vRing = vS + NL
    nv = max(vRing + 4 * R, vRing + 4 * 4)
    assert nv <= 256
    lds_bytes = NW * 1024 + 64
    LDS_M = NW * 1024

    def stamp(j):
        if stamps:
            e(f"    s_memrealtime s[{84+2*j}:{85+2*j}]")

    def issue(un):
        srd = sK if un < NU else sV
        for i in range(U):
            slot = vRing + 4 * ((un % DEP) * U + i)
            e(f"    buffer_load_dwordx4 v[{slot}:{slot+3}], v{vOff}, s[{srd}:{srd+3}], s{sOff} offen offset:{i*1024} {pol}".rstrip())
        if un + 1 < 2 * NU:
            e(f"    s_add_u32 s{sOff}, s{sOff}, {RND}")
            e(f"    s_and_b32 s{sOff}, s{sOff}, 0x3ffff")

    e(HDR + f"; @launch grid=({NWG},1,1) block=({NW*64},1,1) lds={lds_bytes}")
    e('.amdgcn_target "amdgcn-amd-amdhsa--gfx950"')
    e(".text")
    e(f".globl {NAME}")
    e(".p2align 8")
    e(f".type {NAME},@function")
    e(f"{NAME}:")
    if spin:
        e("    s_memrealtime s[98:99]")
    stamp(0)
    e(f"    s_load_dwordx2 s[{sK}:{sK+1}], s[0:1], 8")
    e(f"    s_load_dwordx2 s[{sQ}:{sQ+1}], s[0:1], 0")
    e(f"    s_load_dwordx2 s[{sV}:{sV+1}], s[0:1], 16")
    e(f"    s_load_dwordx2 s[{sO}:{sO+1}], s[0:1], 24")
    e(f"    s_load_dwordx2 s[{sD}:{sD+1}], s[0:1], 32")
    e(f"    s_load_dwordx2 s[{sW}:{sW+1}], s[0:1], 40")
    e(f"    s_cmp_ge_u32 s2, {NWG}")
    e("    s_cbranch_scc1 L_end")
    if stamps:
        e("    s_mov_b32 s94, 0")
    for r, sz in ((sK, 1 << 26), (sV, 1 << 26), (sQ, 16384), (sO, 16384), (sD, 256), (sW, 1 << 28)):
        e(f"    s_mov_b32 s{r+2}, {hex(sz)}")
        e(f"    s_mov_b32 s{r+3}, 0x00020000")
    e(f"    s_lshr_b32 s{sHead}, s2, 2")
    e(f"    s_and_b32 s{sSplit}, s2, 3")
    e(f"    s_lshl_b32 s3, s2, 18")
    e(f"    v_and_b32 v{vLane}, 63, v0")
    e(f"    v_lshrrev_b32 v{vT0}, 6, v0")
    e(f"    v_lshl_add_u32 v{vOff}, v{vLane}, 4, s3")
    e(f"    v_lshl_add_u32 v{vOff}, v{vT0}, {int(math.log2(U*1024))}, v{vOff}")
    e(f"    v_readfirstlane_b32 s{sWave}, v{vT0}")
    e(f"    s_lshl_b32 s{sOutOff}, s{sHead}, 8")
    e(f"    v_and_b32 v{vT1}, 15, v0")
    e(f"    v_lshl_add_u32 v{vT1}, v{vT1}, 4, s{sOutOff}")
    if rot:
        e(f"    s_mul_i32 s{sOff}, s2, 0x9E3779B1")
        e(f"    s_lshr_b32 s{sOff}, s{sOff}, 20")
        e(f"    s_mul_i32 s{sOff}, s{sOff}, {RND}")
        e(f"    s_and_b32 s{sOff}, s{sOff}, 0x3ffff")
    else:
        e(f"    s_mov_b32 s{sOff}, 0")
    if cspread:
        e(f"    s_lshr_b32 s{sT}, s{sHead}, 1")
        e(f"    s_sub_u32 s{sSplit}, s{sSplit}, s{sT}")
        e(f"    s_and_b32 s{sSplit}, s{sSplit}, 3")
    e(f"    s_lshl_b32 s{sT}, s{sHead}, 2")
    if probe >= 0:
        e(f"    s_lshr_b32 s{sFlagOff}, s{sHead}, 1")
        e(f"    s_lshl_b32 s{sFlagOff}, s{sFlagOff}, 2")
        e(f"    s_and_b32 s44, s{sHead}, 1")
        e(f"    s_lshl_b32 s44, s44, 4")
        e(f"    s_lshl_b32 s45, 1, s44")
    else:
        e(f"    s_mov_b32 s{sFlagOff}, s{sT}")
    e(f"    s_add_u32 s{sT}, s{sT}, s{sSplit}")
    e(f"    s_lshl_b32 s{sT}, s{sT}, 10")
    e(f"    v_lshl_add_u32 v{vMb}, v{vLane}, 4, s{sT}")
    for r in range(4):
        e(f"    v_mov_b32 v{vAcc+r}, -1")
    c = math.log2(math.e) / math.sqrt(128.0)
    cbits = struct.unpack("<I", struct.pack("<f", c))[0]
    e(f"    s_mov_b32 s{sC}, {hex(cbits)}")
    e(f"    s_cmp_eq_u32 s{sSplit}, 0")
    e(f"    s_cselect_b32 s{sRole}, 2, 1")
    e(f"    s_cmp_eq_u32 s{sWave}, 0")
    e(f"    s_cselect_b32 s{sRole}, s{sRole}, 0")
    e("    s_waitcnt lgkmcnt(0)")
    stamp(1)
    issue(0)
    e(f"    buffer_load_dwordx4 v[{vQ}:{vQ+3}], v{vT1}, s[{sQ}:{sQ+3}], 0 offen")
    for un in range(1, DEP):
        issue(un)
    e(f"    s_cmp_eq_u32 s{sRole}, 1")
    e("    s_cbranch_scc0 L_noclear")
    e(f"    buffer_store_dwordx4 v[{vAcc}:{vAcc+3}], v{vMb}, s[{sW}:{sW+3}], 0 offen sc1")
    e("L_noclear:")
    e(f"    v_and_b32 v{vT0}, 1, v0")
    e(f"    v_lshlrev_b32 v{vT0}, 4, v{vT0}")
    e(f"    v_mov_b32 v{vT1}, 0xffff")
    e(f"    v_lshlrev_b32 v{vT0}, v{vT0}, v{vT1}")
    e(f"    v_bfe_u32 v{vT1}, v0, 1, 3")
    for r in range(4):
        e(f"    v_cmp_eq_u32 vcc, {r}, v{vT1}")
        e("    s_nop 1")
        e(f"    v_cndmask_b32 v{vMask+r}, 0, v{vT0}, vcc")
    e(f"    v_and_b32 v{vT0}, 15, v{vLane}")
    e(f"    v_lshrrev_b32 v{vT1}, 4, v{vLane}")
    e(f"    v_lshlrev_b32 v{vT0}, 4, v{vT0}")
    e(f"    v_lshl_add_u32 v{vOut}, v{vT1}, 3, v{vT0}")
    e(f"    v_mov_b32 v{vM}, 0xff800000")
    issued = DEP
    total = 2 * NU
    def dpp_steps(regs):
        for sh in (8, 4, 2, 1):
            for r in regs:
                e(f"    v_add_f32_dpp v{r}, v{r}, v{r} row_ror:{sh} row_mask:0xf bank_mask:0xf")
            if len(regs) < 3:
                e(f"    s_nop {2 - len(regs)}")
    G = max(1, 4 // U)
    pend = []
    flagged = False
    for un in range(NU):
        e(f"    s_waitcnt vmcnt({(issued - 1 - un) * U})")
        if un == 0:
            stamp(2)
        if un == DEP and not flagged:
            flagged = True
            e(f"    s_cmp_eq_u32 s{sRole}, 1")
            e("    s_cbranch_scc0 L_noflag")
            e(f"    v_mov_b32 v{vT0}, s{sFlagOff}")
            e(f"    v_mov_b32 v{vT1}, {'s45' if probe >= 0 else 1}")
            e("    s_mov_b64 exec, 1")
            e(f"    buffer_atomic_add v{vT1}, v{vT0}, s[{sD}:{sD+3}], 0 offen sc1")
            e("    s_mov_b64 exec, -1")
            e("L_noflag:")
        for r in range(4):
            for i in range(U):
                slot = vRing + 4 * ((un % DEP) * U + i)
                d = vS + un * U + i
                src2 = "0" if r == 0 else f"v{d}"
                e(f"    v_dot2_f32_bf16 v{d}, v{slot+r}, v{vQ+r}, {src2}")
        if issued < total:
            issue(issued); issued += 1
        pend += [vS + un * U + i for i in range(U)]
        if len(pend) >= 4:
            e("    s_nop 0")
            dpp_steps(pend)
            for j in range(0, len(pend), 2):
                e(f"    v_max3_f32 v{vM}, v{vM}, v{pend[j]}, v{pend[j+1]}")
            pend = []
    assert not pend
    stamp(3)
    e(f"    v_mov_b32 v{vT0}, v{vM}")
    e("    s_nop 1")
    e(f"    v_permlane32_swap_b32 v{vM}, v{vT0}")
    e("    s_nop 1")
    e(f"    v_max_f32 v{vM}, v{vM}, v{vT0}")
    e(f"    v_mov_b32 v{vT0}, v{vM}")
    e("    s_nop 1")
    e(f"    v_permlane16_swap_b32 v{vM}, v{vT0}")
    e("    s_nop 1")
    e(f"    v_max_f32 v{vM}, v{vM}, v{vT0}")
    e(f"    v_mul_f32 v{vM}, s{sC}, v{vM}")
    e(f"    s_lshl_b32 s{sT}, s{sWave}, 2")
    e(f"    v_mov_b32 v{vT0}, s{sT}")
    e(f"    ds_write_b32 v{vT0}, v{vM} offset:{LDS_M}")
    for r in range(4):
        e(f"    v_mov_b32 v{vAcc+r}, 0")
    e(f"    v_mov_b32 v{vL}, 0")
    e(f"    v_mov_b32 v{vL2}, 0")
    def pcalc(idx):
        idx = [i for i in idx if i < NL]
        for i in idx:
            e(f"    v_fma_f32 v{vS+i}, v{vS+i}, s{sC}, -v{vM}")
        for i in idx:
            e(f"    v_exp_f32 v{vS+i}, v{vS+i}")
        if len(idx) == 1:
            e("    s_nop 0")
        for i in idx:
            l = vL if i % 2 == 0 else vL2
            e(f"    v_add_f32 v{l}, v{l}, v{vS+i}")
        for i in idx:
            e(f"    v_cvt_pk_bf16_f32 v{vS+i}, v{vS+i}, v{vS+i}")
    done_p = 0
    pcalc(range(0, U)); done_p = U
    fin_done = False
    for u in range(NU):
        un = NU + u
        for i in range(U):
            a = vA + 4 * ((u * U + i) % 2)
            slot = vRing + 4 * ((un % DEP) * U + i)
            for r in range(4):
                e(f"    v_and_b32 v{a+r}, v{vS+u*U+i}, v{vMask+r}")
            if issued >= total:
                e(f"    s_waitcnt vmcnt({(issued - un) * U - 1 - i})")
                e("    s_nop 0")
            elif i == 0:
                e(f"    s_waitcnt vmcnt({(issued - 1 - un) * U})")
                e("    s_nop 0")
            else:
                e("    s_nop 1")
            e(f"    v_mfma_f32_16x16x32_bf16 v[{vAcc}:{vAcc+3}], v[{a}:{a+3}], v[{slot}:{slot+3}], v[{vAcc}:{vAcc+3}]")
        if issued < total:
            issue(issued); issued += 1
        if done_p < NL:
            pcalc(range(done_p, done_p + 2 * U)); done_p += 2 * U
        elif not fin_done:
            fin_done = True
            e(f"    v_add_f32 v{vL}, v{vL}, v{vL2}")
            e(f"    v_mov_b32 v{vT0}, v{vL}")
            e("    s_nop 1")
            e(f"    v_permlane32_swap_b32 v{vL}, v{vT0}")
            e("    s_nop 1")
            e(f"    v_add_f32 v{vL}, v{vL}, v{vT0}")
            e(f"    v_mov_b32 v{vT0}, v{vL}")
            e("    s_nop 1")
            e(f"    v_permlane16_swap_b32 v{vL}, v{vT0}")
            e("    s_nop 1")
            e(f"    v_add_f32 v{vL}, v{vL}, v{vT0}")
            e("    s_waitcnt lgkmcnt(0)")
            e("    s_barrier")
            e(f"    v_mov_b32 v{vT0}, 0")
            for w in range(0, NW, 4):
                e(f"    ds_read_b128 v[{vS+w}:{vS+w+3}], v{vT0} offset:{LDS_M + 4*w}")
            e(f"    s_cmp_eq_u32 s{sRole}, 2")
            e("    s_cbranch_scc0 L_noflagld")
            e(f"    buffer_load_dword v{vFlag}, v{vT0}, s[{sD}:{sD+3}], s{sFlagOff} offen sc1")
            e("L_noflagld:")
            e(f"    v_cmp_le_u32 vcc, 32, v{vLane}")
            e("    s_waitcnt lgkmcnt(0)")
            if NW == 2:
                e(f"    v_max_f32 v{vT1}, v{vS}, v{vS+1}")
            else:
                e(f"    v_max_f32 v{vT1}, v{vS}, v{vS+1}")
                for w in range(2, NW, 2):
                    e(f"    v_max3_f32 v{vT1}, v{vT1}, v{vS+w}, v{vS+w+1}")
            e(f"    v_sub_f32 v{vF}, v{vM}, v{vT1}")
            e(f"    v_exp_f32 v{vF}, v{vF}")
            e(f"    v_mov_b32 v{vM}, v{vT1}")
            e(f"    v_mul_f32 v{vL}, v{vL}, v{vF}")
            e(f"    v_cndmask_b32 v{vL}, 0, v{vL}, vcc")
            e(f"    v_lshlrev_b32 v{vT0}, 4, v0")
            e(f"    v_lshlrev_b32 v{vT1}, 4, v{vLane}")
    assert fin_done
    stamp(4)
    e("    s_nop 7")
    e(f"    v_fma_f32 v{vAcc}, v{vF}, v{vAcc}, v{vL}")
    for r in range(1, 4):
        e(f"    v_mul_f32 v{vAcc+r}, v{vF}, v{vAcc+r}")
    e(f"    ds_write_b128 v{vT0}, v[{vAcc}:{vAcc+3}]")
    e("    s_waitcnt lgkmcnt(0)")
    e("    s_barrier")
    e(f"    s_cmp_eq_u32 s{sRole}, 0")
    e("    s_cbranch_scc1 L_fin")
    for w in range(1, NW):
        b = vS + 4 * w
        e(f"    ds_read_b128 v[{b}:{b+3}], v{vT1} offset:{w*1024}")
    e("    s_mov_b32 exec_lo, -1")
    e("    s_mov_b32 exec_hi, 1")
    for w in range(1, NW):
        b = vS + 4 * w
        e(f"    s_waitcnt lgkmcnt({NW-1-w})")
        e(f"    v_pk_add_f32 v[{vAcc}:{vAcc+1}], v[{vAcc}:{vAcc+1}], v[{b}:{b+1}]")
        e(f"    v_pk_add_f32 v[{vAcc+2}:{vAcc+3}], v[{vAcc+2}:{vAcc+3}], v[{b+2}:{b+3}]")
    e(f"    v_cndmask_b32 v{vAcc+1}, v{vAcc+1}, v{vM}, vcc")
    e(f"    s_cmp_eq_u32 s{sRole}, 2")
    e("    s_cbranch_scc1 L_consumer")
    for r in range(4):
        e(f"    v_min_u32 v{vAcc+r}, -2, v{vAcc+r}")
    e(f"    buffer_store_dwordx4 v[{vAcc}:{vAcc+3}], v{vMb}, s[{sW}:{sW+3}], 0 offen sc1")
    e("    s_branch L_fin" if stamps else "    s_endpgm")
    e("L_consumer:")
    e(f"    s_mov_b32 s{sCnt}, 0x100000")
    e(f"    v_mov_b32 v{vT0}, 0")
    e("L_flagspin:")
    e(f"    v_readfirstlane_b32 s{sT}, v{vFlag}")
    if probe >= 0:
        e(f"    s_lshr_b32 s{sT}, s{sT}, s44")
        e(f"    s_and_b32 s{sT}, s{sT}, 0xffff")
    e(f"    s_cmp_ge_u32 s{sT}, {NSPLIT-1}")
    e("    s_cbranch_scc1 L_poll")
    e(f"    buffer_load_dword v{vFlag}, v{vT0}, s[{sD}:{sD+3}], s{sFlagOff} offen sc1")
    e(f"    s_sub_u32 s{sCnt}, s{sCnt}, 1")
    e(f"    s_cmp_eq_u32 s{sCnt}, 0")
    e("    s_waitcnt vmcnt(0)")
    e("    s_cbranch_scc0 L_flagspin")
    e("L_poll:")
    for p in range(1, NSPLIT):
        b = vRing + 4 * p
        e(f"    buffer_load_dwordx4 v[{b}:{b+3}], v{vMb}, s[{sW}:{sW+3}], 0 offen offset:{p*1024} sc1")
    e(f"    s_sub_u32 s{sCnt}, s{sCnt}, 1")
    e(f"    s_cmp_le_i32 s{sCnt}, 0")
    e("    s_cbranch_scc1 L_got")
    for p in range(1, NSPLIT):
        b = vRing + 4 * p
        e(f"    s_waitcnt vmcnt({NSPLIT-1-p})")
        if p == 1:
            e(f"    v_max_u32 v{vT0}, v{b}, v{b+1}")
        else:
            e(f"    v_max3_u32 v{vT0}, v{vT0}, v{b}, v{b+1}")
        e(f"    v_max3_u32 v{vT0}, v{vT0}, v{b+2}, v{b+3}")
    e(f"    v_cmp_eq_u32 vcc, -1, v{vT0}")
    e("    s_cbranch_vccnz L_poll")
    e("L_got:")
    e("    s_waitcnt vmcnt(0)")
    def blk(p):
        return vAcc if p == 0 else vRing + 4 * p
    e(f"    v_max_f32 v{vM}, v{blk(0)+1}, v{blk(1)+1}")
    e(f"    v_max3_f32 v{vM}, v{vM}, v{blk(2)+1}, v{blk(3)+1}")
    for p in range(NSPLIT):
        e(f"    v_sub_f32 v{vS+p}, v{blk(p)+1}, v{vM}")
    for p in range(NSPLIT):
        e(f"    v_exp_f32 v{vS+p}, v{vS+p}")
    e(f"    v_mul_f32 v{vL}, v{vS}, v{blk(0)}")
    for p in range(1, NSPLIT):
        e(f"    v_fmac_f32 v{vL}, v{vS+p}, v{blk(p)}")
    e(f"    v_rcp_f32 v{vL}, v{vL}")
    e("    s_nop 0")
    for p in range(NSPLIT):
        e(f"    v_mul_f32 v{vS+p}, v{vS+p}, v{vL}")
    for p in range(NSPLIT):
        e(f"    v_readlane_b32 s{sG+p}, v{vS+p}, 32")
    e("    s_mov_b32 exec_hi, 0")
    for r in range(4):
        e(f"    v_mul_f32 v{vAcc+r}, s{sG}, v{vAcc+r}")
    for p in range(1, NSPLIT):
        for r in range(4):
            e(f"    v_fmac_f32 v{vAcc+r}, s{sG+p}, v{blk(p)+r}")
    e(f"    v_cvt_pk_bf16_f32 v{vAcc}, v{vAcc}, v{vAcc+1}")
    e(f"    v_cvt_pk_bf16_f32 v{vAcc+1}, v{vAcc+2}, v{vAcc+3}")
    e(f"    buffer_store_dwordx2 v[{vAcc}:{vAcc+1}], v{vOut}, s[{sO}:{sO+3}], s{sOutOff} offen")
    if spin:
        e("L_spin:")
        e("    s_memrealtime s[96:97]")
        e("    s_waitcnt lgkmcnt(0)")
        e("    s_sub_u32 s96, s96, s98")
        e(f"    s_cmp_lt_u32 s96, {spin}")
        e("    s_cbranch_scc1 L_spin")
        nsg = 100
    if stamps:
        e("    s_waitcnt vmcnt(0)")
        stamp(5)
        nsg = 100
    e("L_fin:")
    if stamps == 2:
        e("    s_mov_b64 exec, -1")
        e("    s_waitcnt lgkmcnt(0)")
        e(f"    v_mov_b32 v{vS}, 0")
        vals = ["~s84", "s84", "s88", "s92", "s94", "~s92", "~s88", "s90", "s86", "~s86"]
        for j, x in enumerate(vals):
            if x[0] == "~":
                e(f"    s_not_b32 s96, {x[1:]}")
                x = "s96"
            e(f"    v_writelane_b32 v{vS}, {x}, {j}")
        e(f"    v_lshlrev_b32 v{vT0}, 2, v{vLane}")
        e(f"    s_mov_b64 exec, {(1 << len(vals)) - 1}")
        e(f"    buffer_atomic_umax v{vS}, v{vT0}, s[{sD}:{sD+3}], 0 offen offset:128 sc1")
        e(f"    s_or_b32 s96, s2, s{sWave}")
        e("    s_cmp_eq_u32 s96, 0")
        e("    s_cbranch_scc0 L_end")
        e("L_sp1:")
        e("    s_memrealtime s[96:97]")
        e("    s_waitcnt lgkmcnt(0)")
        e("    s_sub_u32 s96, s96, s84")
        e("    s_cmp_lt_u32 s96, 4000")
        e("    s_cbranch_scc1 L_sp1")
        e(f"    v_mov_b32 v{vS}, 0")
        e(f"    buffer_atomic_umax v{vS}, v{vT0}, s[{sD}:{sD+3}], 0 offen offset:128 sc0 sc1")
        e("    s_waitcnt vmcnt(0)")
        e(f"    v_readlane_b32 s46, v{vS}, 0")
        e(f"    v_readlane_b32 s47, v{vS}, {probe}")
        e("    s_nop 3")
        e("    s_not_b32 s46, s46")
        if vals[probe][0] == "~":
            e("    s_not_b32 s47, s47")
        e("    s_sub_u32 s47, s47, s46")
        e("    s_min_u32 s47, s47, 4000")
        e("    s_mul_i32 s47, s47, 10")
        e("    s_add_u32 s47, s47, 5000")
        e("L_sp2:")
        e("    s_memrealtime s[96:97]")
        e("    s_waitcnt lgkmcnt(0)")
        e("    s_sub_u32 s96, s96, s46")
        e("    s_cmp_lt_u32 s96, s47")
        e("    s_cbranch_scc1 L_sp2")
    if stamps == 1:
        e("    s_mov_b64 exec, -1")
        e("    s_getreg_b32 s96, hwreg(HW_REG_XCC_ID)")
        e("    s_getreg_b32 s97, hwreg(HW_REG_HW_ID)")
        e("    s_waitcnt lgkmcnt(0)")
        for j in range(6):
            e(f"    v_mov_b32 v{vS+j}, s{84+2*j}")
        e(f"    v_mov_b32 v{vS+6}, s96")
        e(f"    v_mov_b32 v{vS+7}, s97")
        e(f"    s_mul_i32 s96, s2, {NW}")
        e(f"    s_add_u32 s96, s96, s{sWave}")
        e("    s_lshl_b32 s96, s96, 6")
        e("    s_add_u32 s96, s96, 0x100000")
        e(f"    v_mov_b32 v{vT0}, 0")
        e("    s_mov_b64 exec, 1")
        e(f"    buffer_store_dwordx4 v[{vS}:{vS+3}], v{vT0}, s[{sW}:{sW+3}], s96 offen")
        e(f"    buffer_store_dwordx4 v[{vS+4}:{vS+7}], v{vT0}, s[{sW}:{sW+3}], s96 offen offset:16")
    e("L_end:")
    e("    s_endpgm")
    nvg = (nv + 3) // 4 * 4
    e('.section .rodata,"a"')
    e(".p2align 6")
    e(f".amdhsa_kernel {NAME}")
    e(f"  .amdhsa_next_free_vgpr {nvg}")
    e(f"  .amdhsa_next_free_sgpr {nsg}")
    e(f"  .amdhsa_accum_offset {nvg}")
    e("  .amdhsa_group_segment_fixed_size 0")
    e("  .amdhsa_kernarg_size 48")
    e("  .amdhsa_user_sgpr_count 2")
    e("  .amdhsa_user_sgpr_kernarg_segment_ptr 1")
    e("  .amdhsa_system_sgpr_workgroup_id_x 1")
    e(".end_amdhsa_kernel")
    return "\n".join(o) + "\n"

if __name__ == "__main__":
    out = sys.argv[1]
    kw = {}
    for a in sys.argv[2:]:
        k, v = a.split("=")
        try:
            v = int(v)
        except ValueError:
            pass
        kw[k] = v
    open(out, "w").write(gen(**kw))
```

```python
import sys, math, struct

HDR = """; Kernarg layout for this problem (48 bytes, ptrs only, base s[0:1]):
"""
NAME = "standalone__mha_softmax__decode_kernel"

def gen(NW=4, U=2, DEP=4, pol="nt", LA=4, latebar=16, stamps=0, rot=1, spin=0, cspread=1, npoll=1, probe=-1, noflag=0):
    if probe >= 0: stamps = 2
    NSPLIT = 4
    NWG = 64 * NSPLIT
    NL = 1024 // NW // 4
    NU = NL // U
    R = U * DEP
    RND = U * NW * 1024
    o = []
    e = o.append
    sK, sV, sQ, sO, sD, sW = 4, 8, 12, 16, 20, 24
    sHead, sSplit, sWave, sC = 28, 29, 30, 31
    sOutOff, sRole, sOff, sFlagOff, sCnt, sT = 32, 33, 34, 35, 36, 37
    sG = 40
    nsg = 48
    vOff, vLane, vM, vL, vF, vT0, vT1 = 1, 2, 3, 4, 5, 6, 7
    vQ, vMask, vAcc, vA = 8, 12, 16, 20
    vMb, vFlag, vL2, vOut = 28, 29, 30, 31
    vS = 32
    vRing = vS + NL
    nv = max(vRing + 4 * R, vRing + 4 * 4)
    assert nv <= 256
    lds_bytes = NW * 1024 + 64
    LDS_M = NW * 1024

    def stamp(j):
        if stamps:
            e(f"    s_memrealtime s[{84+2*j}:{85+2*j}]")

    def issue(un):
        srd = sK if un < NU else sV
        for i in range(U):
            slot = vRing + 4 * ((un % DEP) * U + i)
            e(f"    buffer_load_dwordx4 v[{slot}:{slot+3}], v{vOff}, s[{srd}:{srd+3}], s{sOff} offen offset:{i*1024} {pol}".rstrip())
        if un + 1 < 2 * NU:
            e(f"    s_add_u32 s{sOff}, s{sOff}, {RND}")
            e(f"    s_and_b32 s{sOff}, s{sOff}, 0x3ffff")

    e(HDR + f"; @launch grid=({NWG},1,1) block=({NW*64},1,1) lds={lds_bytes}")
    e('.amdgcn_target "amdgcn-amd-amdhsa--gfx950"')
    e(".text")
    e(f".globl {NAME}")
    e(".p2align 8")
    e(f".type {NAME},@function")
    e(f"{NAME}:")
    if spin:
        e("    s_memrealtime s[98:99]")
    stamp(0)
    e(f"    s_load_dwordx2 s[{sK}:{sK+1}], s[0:1], 8")
    e(f"    s_load_dwordx2 s[{sQ}:{sQ+1}], s[0:1], 0")
    e(f"    s_load_dwordx2 s[{sV}:{sV+1}], s[0:1], 16")
    e(f"    s_load_dwordx2 s[{sO}:{sO+1}], s[0:1], 24")
    e(f"    s_load_dwordx2 s[{sD}:{sD+1}], s[0:1], 32")
    e(f"    s_load_dwordx2 s[{sW}:{sW+1}], s[0:1], 40")
    e(f"    s_cmp_ge_u32 s2, {NWG}")
    e("    s_cbranch_scc1 L_end")
    if stamps:
        e("    s_mov_b32 s94, 0")
    for r, sz in ((sK, 1 << 26), (sV, 1 << 26), (sQ, 16384), (sO, 16384), (sD, 256), (sW, 1 << 28)):
        e(f"    s_mov_b32 s{r+2}, {hex(sz)}")
        e(f"    s_mov_b32 s{r+3}, 0x00020000")
    e(f"    s_lshr_b32 s{sHead}, s2, 2")
    e(f"    s_and_b32 s{sSplit}, s2, 3")
    e(f"    s_lshl_b32 s3, s2, 18")
    e(f"    v_and_b32 v{vLane}, 63, v0")
    e(f"    v_lshrrev_b32 v{vT0}, 6, v0")
    e(f"    v_lshl_add_u32 v{vOff}, v{vLane}, 4, s3")
    e(f"    v_lshl_add_u32 v{vOff}, v{vT0}, {int(math.log2(U*1024))}, v{vOff}")
    e(f"    v_readfirstlane_b32 s{sWave}, v{vT0}")
    e(f"    s_lshl_b32 s{sOutOff}, s{sHead}, 8")
    e(f"    v_and_b32 v{vT1}, 15, v0")
    e(f"    v_lshl_add_u32 v{vT1}, v{vT1}, 4, s{sOutOff}")
    if rot:
        e(f"    s_mul_i32 s{sOff}, s2, 0x9E3779B1")
        e(f"    s_lshr_b32 s{sOff}, s{sOff}, 20")
        e(f"    s_mul_i32 s{sOff}, s{sOff}, {RND}")
        e(f"    s_and_b32 s{sOff}, s{sOff}, 0x3ffff")
    else:
        e(f"    s_mov_b32 s{sOff}, 0")
    if cspread:
        e(f"    s_lshr_b32 s{sT}, s{sHead}, 1")
        e(f"    s_sub_u32 s{sSplit}, s{sSplit}, s{sT}")
        e(f"    s_and_b32 s{sSplit}, s{sSplit}, 3")
    e(f"    s_lshl_b32 s{sT}, s{sHead}, 2")
    if probe >= 0:
        e(f"    s_lshr_b32 s{sFlagOff}, s{sHead}, 1")
        e(f"    s_lshl_b32 s{sFlagOff}, s{sFlagOff}, 2")
        e(f"    s_and_b32 s44, s{sHead}, 1")
        e(f"    s_lshl_b32 s44, s44, 4")
        e(f"    s_lshl_b32 s45, 1, s44")
    else:
        e(f"    s_mov_b32 s{sFlagOff}, s{sT}")
    e(f"    s_add_u32 s{sT}, s{sT}, s{sSplit}")
    e(f"    s_lshl_b32 s{sT}, s{sT}, 10")
    e(f"    v_lshl_add_u32 v{vMb}, v{vLane}, 4, s{sT}")
    for r in range(4):
        e(f"    v_mov_b32 v{vAcc+r}, -1")
    c = math.log2(math.e) / math.sqrt(128.0)
    cbits = struct.unpack("<I", struct.pack("<f", c))[0]
    e(f"    s_mov_b32 s{sC}, {hex(cbits)}")
    e(f"    s_cmp_eq_u32 s{sSplit}, 0")
    e(f"    s_cselect_b32 s{sRole}, 2, 1")
    e(f"    s_cmp_eq_u32 s{sWave}, 0")
    e(f"    s_cselect_b32 s{sRole}, s{sRole}, 0")
    e("    s_waitcnt lgkmcnt(0)")
    stamp(1)
    issue(0)
    e(f"    buffer_load_dwordx4 v[{vQ}:{vQ+3}], v{vT1}, s[{sQ}:{sQ+3}], 0 offen")
    for un in range(1, DEP):
        issue(un)
    e(f"    s_cmp_eq_u32 s{sRole}, 1")
    e("    s_cbranch_scc0 L_noclear")
    e(f"    buffer_store_dwordx4 v[{vAcc}:{vAcc+3}], v{vMb}, s[{sW}:{sW+3}], 0 offen sc1")
    e("L_noclear:")
    e(f"    v_and_b32 v{vT0}, 1, v0")
    e(f"    v_lshlrev_b32 v{vT0}, 4, v{vT0}")
    e(f"    v_mov_b32 v{vT1}, 0xffff")
    e(f"    v_lshlrev_b32 v{vT0}, v{vT0}, v{vT1}")
    e(f"    v_bfe_u32 v{vT1}, v0, 1, 3")
    for r in range(4):
        e(f"    v_cmp_eq_u32 vcc, {r}, v{vT1}")
        e("    s_nop 1")
        e(f"    v_cndmask_b32 v{vMask+r}, 0, v{vT0}, vcc")
    e(f"    v_and_b32 v{vT0}, 15, v{vLane}")
    e(f"    v_lshrrev_b32 v{vT1}, 4, v{vLane}")
    e(f"    v_lshlrev_b32 v{vT0}, 4, v{vT0}")
    e(f"    v_lshl_add_u32 v{vOut}, v{vT1}, 3, v{vT0}")
    e(f"    v_mov_b32 v{vM}, 0xff800000")
    issued = DEP
    total = 2 * NU
    def dpp_steps(regs):
        for sh in (8, 4, 2, 1):
            for r in regs:
                e(f"    v_add_f32_dpp v{r}, v{r}, v{r} row_ror:{sh} row_mask:0xf bank_mask:0xf")
            if len(regs) < 3:
                e(f"    s_nop {2 - len(regs)}")
    G = max(1, 4 // U)
    pend = []
    flagged = False
    for un in range(NU):
        e(f"    s_waitcnt vmcnt({(issued - 1 - un) * U})")
        if un == 0:
            stamp(2)
        if un == DEP and not flagged and not noflag:
            flagged = True
            e(f"    s_cmp_eq_u32 s{sRole}, 1")
            e("    s_cbranch_scc0 L_noflag")
            e(f"    v_mov_b32 v{vT0}, s{sFlagOff}")
            e(f"    v_mov_b32 v{vT1}, {'s45' if probe >= 0 else 1}")
            e("    s_mov_b64 exec, 1")
            e(f"    buffer_atomic_add v{vT1}, v{vT0}, s[{sD}:{sD+3}], 0 offen sc1")
            e("    s_mov_b64 exec, -1")
            e("L_noflag:")
        for r in range(4):
            for i in range(U):
                slot = vRing + 4 * ((un % DEP) * U + i)
                d = vS + un * U + i
                src2 = "0" if r == 0 else f"v{d}"
                e(f"    v_dot2_f32_bf16 v{d}, v{slot+r}, v{vQ+r}, {src2}")
        if issued < total:
            issue(issued); issued += 1
        pend += [vS + un * U + i for i in range(U)]
        if len(pend) >= 4:
            e("    s_nop 0")
            dpp_steps(pend)
            for j in range(0, len(pend), 2):
                e(f"    v_max3_f32 v{vM}, v{vM}, v{pend[j]}, v{pend[j+1]}")
            pend = []
    assert not pend
    stamp(3)
    e(f"    v_mov_b32 v{vT0}, v{vM}")
    e("    s_nop 1")
    e(f"    v_permlane32_swap_b32 v{vM}, v{vT0}")
    e("    s_nop 1")
    e(f"    v_max_f32 v{vM}, v{vM}, v{vT0}")
    e(f"    v_mov_b32 v{vT0}, v{vM}")
    e("    s_nop 1")
    e(f"    v_permlane16_swap_b32 v{vM}, v{vT0}")
    e("    s_nop 1")
    e(f"    v_max_f32 v{vM}, v{vM}, v{vT0}")
    e(f"    v_mul_f32 v{vM}, s{sC}, v{vM}")
    e(f"    s_lshl_b32 s{sT}, s{sWave}, 2")
    e(f"    v_mov_b32 v{vT0}, s{sT}")
    e(f"    ds_write_b32 v{vT0}, v{vM} offset:{LDS_M}")
    for r in range(4):
        e(f"    v_mov_b32 v{vAcc+r}, 0")
    e(f"    v_mov_b32 v{vL}, 0")
    e(f"    v_mov_b32 v{vL2}, 0")
    def pcalc(idx):
        idx = [i for i in idx if i < NL]
        for i in idx:
            e(f"    v_fma_f32 v{vS+i}, v{vS+i}, s{sC}, -v{vM}")
        for i in idx:
            e(f"    v_exp_f32 v{vS+i}, v{vS+i}")
        if len(idx) == 1:
            e("    s_nop 0")
        for i in idx:
            l = vL if i % 2 == 0 else vL2
            e(f"    v_add_f32 v{l}, v{l}, v{vS+i}")
        for i in idx:
            e(f"    v_cvt_pk_bf16_f32 v{vS+i}, v{vS+i}, v{vS+i}")
    done_p = 0
    pcalc(range(0, U)); done_p = U
    fin_done = False
    for u in range(NU):
        un = NU + u
        for i in range(U):
            a = vA + 4 * ((u * U + i) % 2)
            slot = vRing + 4 * ((un % DEP) * U + i)
            for r in range(4):
                e(f"    v_and_b32 v{a+r}, v{vS+u*U+i}, v{vMask+r}")
            if issued >= total:
                e(f"    s_waitcnt vmcnt({(issued - un) * U - 1 - i})")
                e("    s_nop 0")
            elif i == 0:
                e(f"    s_waitcnt vmcnt({(issued - 1 - un) * U})")
                e("    s_nop 0")
            else:
                e("    s_nop 1")
            e(f"    v_mfma_f32_16x16x32_bf16 v[{vAcc}:{vAcc+3}], v[{a}:{a+3}], v[{slot}:{slot+3}], v[{vAcc}:{vAcc+3}]")
        if issued < total:
            issue(issued); issued += 1
        if done_p < NL:
            pcalc(range(done_p, done_p + 2 * U)); done_p += 2 * U
        elif not fin_done:
            fin_done = True
            e(f"    v_add_f32 v{vL}, v{vL}, v{vL2}")
            e(f"    v_mov_b32 v{vT0}, v{vL}")
            e("    s_nop 1")
            e(f"    v_permlane32_swap_b32 v{vL}, v{vT0}")
            e("    s_nop 1")
            e(f"    v_add_f32 v{vL}, v{vL}, v{vT0}")
            e(f"    v_mov_b32 v{vT0}, v{vL}")
            e("    s_nop 1")
            e(f"    v_permlane16_swap_b32 v{vL}, v{vT0}")
            e("    s_nop 1")
            e(f"    v_add_f32 v{vL}, v{vL}, v{vT0}")
            e("    s_waitcnt lgkmcnt(0)")
            e("    s_barrier")
            e(f"    v_mov_b32 v{vT0}, 0")
            for w in range(0, NW, 4):
                e(f"    ds_read_b128 v[{vS+w}:{vS+w+3}], v{vT0} offset:{LDS_M + 4*w}")
            e(f"    s_cmp_eq_u32 s{sRole}, 2")
            e("    s_cbranch_scc0 L_noflagld")
            e(f"    buffer_load_dword v{vFlag}, v{vT0}, s[{sD}:{sD+3}], s{sFlagOff} offen sc1")
            e("L_noflagld:")
            e(f"    v_cmp_le_u32 vcc, 32, v{vLane}")
            e("    s_waitcnt lgkmcnt(0)")
            if NW == 2:
                e(f"    v_max_f32 v{vT1}, v{vS}, v{vS+1}")
            else:
                e(f"    v_max_f32 v{vT1}, v{vS}, v{vS+1}")
                for w in range(2, NW, 2):
                    e(f"    v_max3_f32 v{vT1}, v{vT1}, v{vS+w}, v{vS+w+1}")
            e(f"    v_sub_f32 v{vF}, v{vM}, v{vT1}")
            e(f"    v_exp_f32 v{vF}, v{vF}")
            e(f"    v_mov_b32 v{vM}, v{vT1}")
            e(f"    v_mul_f32 v{vL}, v{vL}, v{vF}")
            e(f"    v_cndmask_b32 v{vL}, 0, v{vL}, vcc")
            e(f"    v_lshlrev_b32 v{vT0}, 4, v0")
            e(f"    v_lshlrev_b32 v{vT1}, 4, v{vLane}")
    assert fin_done
    stamp(4)
    e("    s_nop 7")
    e(f"    v_fma_f32 v{vAcc}, v{vF}, v{vAcc}, v{vL}")
    for r in range(1, 4):
        e(f"    v_mul_f32 v{vAcc+r}, v{vF}, v{vAcc+r}")
    e(f"    ds_write_b128 v{vT0}, v[{vAcc}:{vAcc+3}]")
    e("    s_waitcnt lgkmcnt(0)")
    e("    s_barrier")
    e(f"    s_cmp_eq_u32 s{sRole}, 0")
    e("    s_cbranch_scc1 L_fin")
    for w in range(1, NW):
        b = vS + 4 * w
        e(f"    ds_read_b128 v[{b}:{b+3}], v{vT1} offset:{w*1024}")
    e("    s_mov_b32 exec_lo, -1")
    e("    s_mov_b32 exec_hi, 1")
    for w in range(1, NW):
        b = vS + 4 * w
        e(f"    s_waitcnt lgkmcnt({NW-1-w})")
        e(f"    v_pk_add_f32 v[{vAcc}:{vAcc+1}], v[{vAcc}:{vAcc+1}], v[{b}:{b+1}]")
        e(f"    v_pk_add_f32 v[{vAcc+2}:{vAcc+3}], v[{vAcc+2}:{vAcc+3}], v[{b+2}:{b+3}]")
    e(f"    v_cndmask_b32 v{vAcc+1}, v{vAcc+1}, v{vM}, vcc")
    e(f"    s_cmp_eq_u32 s{sRole}, 2")
    e("    s_cbranch_scc1 L_consumer")
    for r in range(4):
        e(f"    v_min_u32 v{vAcc+r}, -2, v{vAcc+r}")
    e(f"    buffer_store_dwordx4 v[{vAcc}:{vAcc+3}], v{vMb}, s[{sW}:{sW+3}], 0 offen sc1")
    e("    s_branch L_fin" if stamps else "    s_endpgm")
    e("L_consumer:")
    e(f"    s_mov_b32 s{sCnt}, 0x100000")
    e(f"    v_mov_b32 v{vT0}, 0")
    e("L_flagspin:")
    e(f"    v_readfirstlane_b32 s{sT}, v{vFlag}")
    if probe >= 0:
        e(f"    s_lshr_b32 s{sT}, s{sT}, s44")
        e(f"    s_and_b32 s{sT}, s{sT}, 0xffff")
    e(f"    s_cmp_ge_u32 s{sT}, {0 if noflag else NSPLIT-1}")
    e("    s_cbranch_scc1 L_poll")
    e(f"    buffer_load_dword v{vFlag}, v{vT0}, s[{sD}:{sD+3}], s{sFlagOff} offen sc1")
    e(f"    s_sub_u32 s{sCnt}, s{sCnt}, 1")
    e(f"    s_cmp_eq_u32 s{sCnt}, 0")
    e("    s_waitcnt vmcnt(0)")
    e("    s_cbranch_scc0 L_flagspin")
    e("L_poll:")
    for p in range(1, NSPLIT):
        b = vRing + 4 * p
        e(f"    buffer_load_dwordx4 v[{b}:{b+3}], v{vMb}, s[{sW}:{sW+3}], 0 offen offset:{p*1024} sc1")
    e(f"    s_sub_u32 s{sCnt}, s{sCnt}, 1")
    e(f"    s_cmp_le_i32 s{sCnt}, 0")
    e("    s_cbranch_scc1 L_got")
    for p in range(1, NSPLIT):
        b = vRing + 4 * p
        e(f"    s_waitcnt vmcnt({NSPLIT-1-p})")
        if p == 1:
            e(f"    v_max_u32 v{vT0}, v{b}, v{b+1}")
        else:
            e(f"    v_max3_u32 v{vT0}, v{vT0}, v{b}, v{b+1}")
        e(f"    v_max3_u32 v{vT0}, v{vT0}, v{b+2}, v{b+3}")
    e(f"    v_cmp_eq_u32 vcc, -1, v{vT0}")
    e("    s_cbranch_vccnz L_poll")
    e("L_got:")
    e("    s_waitcnt vmcnt(0)")
    def blk(p):
        return vAcc if p == 0 else vRing + 4 * p
    e(f"    v_max_f32 v{vM}, v{blk(0)+1}, v{blk(1)+1}")
    e(f"    v_max3_f32 v{vM}, v{vM}, v{blk(2)+1}, v{blk(3)+1}")
    for p in range(NSPLIT):
        e(f"    v_sub_f32 v{vS+p}, v{blk(p)+1}, v{vM}")
    for p in range(NSPLIT):
        e(f"    v_exp_f32 v{vS+p}, v{vS+p}")
    e(f"    v_mul_f32 v{vL}, v{vS}, v{blk(0)}")
    for p in range(1, NSPLIT):
        e(f"    v_fmac_f32 v{vL}, v{vS+p}, v{blk(p)}")
    e(f"    v_rcp_f32 v{vL}, v{vL}")
    e("    s_nop 0")
    for p in range(NSPLIT):
        e(f"    v_mul_f32 v{vS+p}, v{vS+p}, v{vL}")
    for p in range(NSPLIT):
        e(f"    v_readlane_b32 s{sG+p}, v{vS+p}, 32")
    e("    s_mov_b32 exec_hi, 0")
    for r in range(4):
        e(f"    v_mul_f32 v{vAcc+r}, s{sG}, v{vAcc+r}")
    for p in range(1, NSPLIT):
        for r in range(4):
            e(f"    v_fmac_f32 v{vAcc+r}, s{sG+p}, v{blk(p)+r}")
    e(f"    v_cvt_pk_bf16_f32 v{vAcc}, v{vAcc}, v{vAcc+1}")
    e(f"    v_cvt_pk_bf16_f32 v{vAcc+1}, v{vAcc+2}, v{vAcc+3}")
    e(f"    buffer_store_dwordx2 v[{vAcc}:{vAcc+1}], v{vOut}, s[{sO}:{sO+3}], s{sOutOff} offen")
    if spin:
        e("L_spin:")
        e("    s_memrealtime s[96:97]")
        e("    s_waitcnt lgkmcnt(0)")
        e("    s_sub_u32 s96, s96, s98")
        e(f"    s_cmp_lt_u32 s96, {spin}")
        e("    s_cbranch_scc1 L_spin")
        nsg = 100
    if stamps:
        e("    s_waitcnt vmcnt(0)")
        stamp(5)
        nsg = 100
    e("L_fin:")
    if stamps == 2:
        e("    s_mov_b64 exec, -1")
        e("    s_waitcnt lgkmcnt(0)")
        e(f"    v_mov_b32 v{vS}, 0")
        vals = ["~s84", "s84", "s88", "s92", "s94", "~s92", "~s88", "s90", "s86", "~s86"]
        for j, x in enumerate(vals):
            if x[0] == "~":
                e(f"    s_not_b32 s96, {x[1:]}")
                x = "s96"
            e(f"    v_writelane_b32 v{vS}, {x}, {j}")
        e(f"    v_lshlrev_b32 v{vT0}, 2, v{vLane}")
        e("L_sp0:")
        e("    s_sleep 8")
        e("    s_memrealtime s[96:97]")
        e("    s_waitcnt lgkmcnt(0)")
        e("    s_sub_u32 s96, s96, s84")
        e("    s_cmp_lt_u32 s96, 2800")
        e("    s_cbranch_scc1 L_sp0")
        e(f"    s_mov_b64 exec, {(1 << len(vals)) - 1}")
        e(f"    buffer_atomic_umax v{vS}, v{vT0}, s[{sD}:{sD+3}], 0 offen offset:128 sc1")
        e(f"    s_or_b32 s96, s2, s{sWave}")
        e("    s_cmp_eq_u32 s96, 0")
        e("    s_cbranch_scc0 L_end")
        e("L_sp1:")
        e("    s_memrealtime s[96:97]")
        e("    s_waitcnt lgkmcnt(0)")
        e("    s_sub_u32 s96, s96, s84")
        e("    s_cmp_lt_u32 s96, 4800")
        e("    s_cbranch_scc1 L_sp1")
        e(f"    v_mov_b32 v{vS}, 0")
        e(f"    buffer_atomic_umax v{vS}, v{vT0}, s[{sD}:{sD+3}], 0 offen offset:128 sc0 sc1")
        e("    s_waitcnt vmcnt(0)")
        e(f"    v_readlane_b32 s46, v{vS}, 0")
        e(f"    v_readlane_b32 s47, v{vS}, {probe}")
        e("    s_nop 3")
        e("    s_not_b32 s46, s46")
        if vals[probe][0] == "~":
            e("    s_not_b32 s47, s47")
        e("    s_sub_u32 s47, s47, s46")
        e("    s_min_u32 s47, s47, 4000")
        e("    s_mul_i32 s47, s47, 10")
        e("    s_add_u32 s47, s47, 5000")
        e("L_sp2:")
        e("    s_memrealtime s[96:97]")
        e("    s_waitcnt lgkmcnt(0)")
        e("    s_sub_u32 s96, s96, s46")
        e("    s_cmp_lt_u32 s96, s47")
        e("    s_cbranch_scc1 L_sp2")
    if stamps == 1:
        e("    s_mov_b64 exec, -1")
        e("    s_getreg_b32 s96, hwreg(HW_REG_XCC_ID)")
        e("    s_getreg_b32 s97, hwreg(HW_REG_HW_ID)")
        e("    s_waitcnt lgkmcnt(0)")
        for j in range(6):
            e(f"    v_mov_b32 v{vS+j}, s{84+2*j}")
        e(f"    v_mov_b32 v{vS+6}, s96")
        e(f"    v_mov_b32 v{vS+7}, s97")
        e(f"    s_mul_i32 s96, s2, {NW}")
        e(f"    s_add_u32 s96, s96, s{sWave}")
        e("    s_lshl_b32 s96, s96, 6")
        e("    s_add_u32 s96, s96, 0x100000")
        e(f"    v_mov_b32 v{vT0}, 0")
        e("    s_mov_b64 exec, 1")
        e(f"    buffer_store_dwordx4 v[{vS}:{vS+3}], v{vT0}, s[{sW}:{sW+3}], s96 offen")
        e(f"    buffer_store_dwordx4 v[{vS+4}:{vS+7}], v{vT0}, s[{sW}:{sW+3}], s96 offen offset:16")
    e("L_end:")
    e("    s_endpgm")
    nvg = (nv + 3) // 4 * 4
    e('.section .rodata,"a"')
    e(".p2align 6")
    e(f".amdhsa_kernel {NAME}")
    e(f"  .amdhsa_next_free_vgpr {nvg}")
    e(f"  .amdhsa_next_free_sgpr {nsg}")
    e(f"  .amdhsa_accum_offset {nvg}")
    e("  .amdhsa_group_segment_fixed_size 0")
    e("  .amdhsa_kernarg_size 48")
    e("  .amdhsa_user_sgpr_count 2")
    e("  .amdhsa_user_sgpr_kernarg_segment_ptr 1")
    e("  .amdhsa_system_sgpr_workgroup_id_x 1")
    e(".end_amdhsa_kernel")
    return "\n".join(o) + "\n"

if __name__ == "__main__":
    out = sys.argv[1]
    kw = {}
    for a in sys.argv[2:]:
        k, v = a.split("=")
        try:
            v = int(v)
        except ValueError:
            pass
        kw[k] = v
    open(out, "w").write(gen(**kw))
```

```python
import sys, math, struct

HDR = """; Kernarg layout for this problem (48 bytes, ptrs only, base s[0:1]):
"""
NAME = "standalone__mha_softmax__decode_kernel"

def gen(U=2, DEP=4, pol="nt", stamps=0, rot=0, barback=4, gmap=1, hfirst=1, rmul=0x9E3779B1, rsh=20,
        fast=1, opol="", kbar=-1, nsets=1, ppol="sc1", spol=""):
    NW = 4
    NSPLIT = 4
    NWG = 256
    NL = 64
    NU = NL // U
    R = U * DEP
    RND = U * NW * 1024
    MBS = 1024
    o = []
    e = o.append
    sK, sV, sQ, sO, sD, sW = 4, 8, 12, 16, 20, 24
    sHead, sSlot, sWave, sC = 28, 29, 30, 31
    sOutOff, sXcc, sOff, sFlagOff, sCnt, sT, sMb, sPass = 32, 33, 34, 35, 36, 37, 38, 39
    sG = 40
    sId = 48
    nsg = 50
    vOff, vLane, vM, vL, vT0, vT1 = 1, 2, 4, 5, 6, 7
    vQ, vMask, vAcc, vA = 8, 12, 16, 20
    vMb, vFlag, vL2, vOut = 28, 29, 30, 31
    vS = 32
    vRing = vS + NL
    nv = vRing + 4 * R
    assert nv <= 256
    LDS_ML = NW * 512
    lds_bytes = LDS_ML + 64
    HW = 0 if hfirst else NW
    SPIN = 0x40000

    def stamp(j):
        if stamps:
            e(f"    s_memrealtime s[{84+2*j}:{85+2*j}]")

    def srd(r, sz):
        e(f"    s_mov_b32 s{r+2}, {hex(sz)}")
        e(f"    s_mov_b32 s{r+3}, 0x00020000")

    def issue(un):
        b = sK if un < NU else sV
        for i in range(U):
            slot = vRing + 4 * ((un % DEP) * U + i)
            e(f"    buffer_load_dwordx4 v[{slot}:{slot+3}], v{vOff}, s[{b}:{b+3}], s{sOff} offen offset:{i*1024} {pol}".rstrip())
        if un + 1 < 2 * NU:
            if rot:
                e(f"    s_add_u32 s{sOff}, s{sOff}, {RND}")
                e(f"    s_and_b32 s{sOff}, s{sOff}, 0x3ffff")
            elif un + 1 == NU:
                e(f"    s_mov_b32 s{sOff}, 0")
            else:
                e(f"    s_add_u32 s{sOff}, s{sOff}, {RND}")

    e(HDR + f"; @launch grid=({NWG},1,1) block=({(NW+1)*64},1,1) lds={lds_bytes}")
    e('.amdgcn_target "amdgcn-amd-amdhsa--gfx950"')
    e(".text")
    e(f".globl {NAME}")
    e(".p2align 8")
    e(f".type {NAME},@function")
    e(f"{NAME}:")
    stamp(0)
    e(f"    s_load_dwordx2 s[{sQ}:{sQ+1}], s[0:1], 0")
    e(f"    s_load_dwordx2 s[{sK}:{sK+1}], s[0:1], 8")
    e(f"    s_load_dwordx2 s[{sV}:{sV+1}], s[0:1], 16")
    if stamps:
        e(f"    s_load_dwordx2 s[{sW}:{sW+1}], s[0:1], 40")
        srd(sW, 1 << 28)
        for j in range(1, 6):
            e(f"    s_mov_b32 s{84+2*j}, 0")
    e(f"    s_cmp_ge_u32 s2, {NWG}")
    e("    s_cbranch_scc1 L_end")
    e(f"    v_lshrrev_b32 v{vT0}, 6, v0")
    e(f"    v_and_b32 v{vLane}, 63, v0")
    e(f"    v_readfirstlane_b32 s{sWave}, v{vT0}")
    if gmap == 0:
        e(f"    s_mov_b32 s{sId}, s2")
    else:
        e(f"    s_and_b32 s{sId}, s2, 7")
        e(f"    s_lshl_b32 s{sId}, s{sId}, 5")
        e(f"    s_lshr_b32 s{sT}, s2, 3")
        e(f"    s_or_b32 s{sId}, s{sId}, s{sT}")
    e(f"    s_lshr_b32 s{sHead}, s{sId}, 2")
    e(f"    s_lshl_b32 s{sOutOff}, s{sHead}, 8")
    e(f"    s_cmp_eq_u32 s{sWave}, {HW}")
    e("    s_cbranch_scc1 L_helper")
    e(f"    s_lshl_b32 s3, s{sId}, 18")
    if hfirst:
        e(f"    s_sub_u32 s3, s3, {U*1024}")
    srd(sK, 1 << 26)
    srd(sQ, 16384)
    if rot:
        e(f"    s_mul_i32 s{sOff}, s2, {hex(rmul)}")
        e(f"    s_lshr_b32 s{sOff}, s{sOff}, {rsh - int(math.log2(RND))}")
        e(f"    s_and_b32 s{sOff}, s{sOff}, {hex(0x3ffff & ~(RND-1))}")
    else:
        e(f"    s_mov_b32 s{sOff}, 0")
    e(f"    v_lshl_add_u32 v{vOff}, v{vLane}, 4, s3")
    e(f"    v_lshl_add_u32 v{vOff}, v{vT0}, {int(math.log2(U*1024))}, v{vOff}")
    e(f"    v_and_b32 v{vT1}, 15, v0")
    e(f"    v_lshlrev_b32 v{vT1}, 4, v{vT1}")
    e("    s_waitcnt lgkmcnt(0)")
    stamp(1)
    e(f"    buffer_load_dwordx4 v[{vQ}:{vQ+3}], v{vT1}, s[{sQ}:{sQ+3}], s{sOutOff} offen")
    for un in range(DEP):
        issue(un)
    srd(sV, 1 << 26)
    c = math.log2(math.e) / math.sqrt(128.0)
    cbits = struct.unpack("<I", struct.pack("<f", c))[0]
    e(f"    s_mov_b32 s{sC}, {hex(cbits)}")
    if hfirst:
        e(f"    s_sub_u32 s{sWave}, s{sWave}, 1")
    e(f"    v_and_b32 v{vT0}, 1, v0")
    e(f"    v_lshlrev_b32 v{vT0}, 4, v{vT0}")
    e(f"    v_mov_b32 v{vT1}, 0xffff")
    e(f"    v_lshlrev_b32 v{vT0}, v{vT0}, v{vT1}")
    e(f"    v_bfe_u32 v{vT1}, v0, 1, 3")
    for r in range(4):
        e(f"    v_cmp_eq_u32 vcc, {r}, v{vT1}")
        e("    s_nop 1")
        e(f"    v_cndmask_b32 v{vMask+r}, 0, v{vT0}, vcc")
    e(f"    v_mov_b32 v{vM}, 0xff800000")
    e(f"    s_lshl_b32 s{sT}, s{sWave}, 9")
    e(f"    v_lshl_add_u32 v{vOut}, v{vLane}, 4, s{sT}")
    issued = DEP
    total = 2 * NU
    pend = []
    for un in range(NU):
        e(f"    s_waitcnt vmcnt({(issued - 1 - un) * U})")
        if un == 0:
            stamp(2)
        for r in range(4):
            for i in range(U):
                slot = vRing + 4 * ((un % DEP) * U + i)
                d = vS + un * U + i
                src2 = "0" if r == 0 else f"v{d}"
                e(f"    v_dot2_f32_bf16 v{d}, v{slot+r}, v{vQ+r}, {src2}")
        issue(issued); issued += 1
        if un == kbar:
            e("    s_barrier")
        pend += [vS + un * U + i for i in range(U)]
        if len(pend) >= 4:
            for sh in (8, 4, 2, 1):
                for r in pend:
                    e(f"    v_add_f32_dpp v{r}, v{r}, v{r} row_ror:{sh} row_mask:0xf bank_mask:0xf")
            for j in range(0, len(pend), 2):
                e(f"    v_max3_f32 v{vM}, v{vM}, v{pend[j]}, v{pend[j+1]}")
            pend = []
    assert not pend
    stamp(3)
    def xreduce(v, op):
        e(f"    v_mov_b32 v{vT0}, v{v}")
        e("    s_nop 1")
        e(f"    v_permlane32_swap_b32 v{v}, v{vT0}")
        e("    s_nop 1")
        e(f"    {op} v{v}, v{v}, v{vT0}")
        e(f"    v_mov_b32 v{vT0}, v{v}")
        e("    s_nop 1")
        e(f"    v_permlane16_swap_b32 v{v}, v{vT0}")
        e("    s_nop 1")
        e(f"    {op} v{v}, v{v}, v{vT0}")
    xreduce(vM, "v_max_f32")
    e(f"    v_mul_f32 v{vM}, s{sC}, v{vM}")
    for r in range(4):
        e(f"    v_mov_b32 v{vAcc+r}, 0")
    e(f"    v_mov_b32 v{vL}, 0")
    e(f"    v_mov_b32 v{vL2}, 0")
    def pcalc(idx):
        idx = [i for i in idx if i < NL]
        for i in idx:
            e(f"    v_fma_f32 v{vS+i}, v{vS+i}, s{sC}, -v{vM}")
        for i in idx:
            e(f"    v_exp_f32 v{vS+i}, v{vS+i}")
        if len(idx) == 1:
            e("    s_nop 0")
        for i in idx:
            l = vL if i % 2 == 0 else vL2
            e(f"    v_add_f32 v{l}, v{l}, v{vS+i}")
        for i in idx:
            e(f"    v_cvt_pk_bf16_f32 v{vS+i}, v{vS+i}, v{vS+i}")
    pcalc(range(0, U)); done_p = U
    l_done = False
    bar_u = NU - DEP - 1 - barback
    for u in range(NU):
        un = NU + u
        for i in range(U):
            a = vA + 4 * ((u * U + i) % 2)
            slot = vRing + 4 * ((un % DEP) * U + i)
            for r in range(4):
                e(f"    v_and_b32 v{a+r}, v{vS+u*U+i}, v{vMask+r}")
            if issued >= total:
                e("    s_nop 0")
                e(f"    s_waitcnt vmcnt({(issued - un) * U - 1 - i})")
            elif i == 0:
                e("    s_nop 0")
                e(f"    s_waitcnt vmcnt({(issued - 1 - un) * U})")
            else:
                e("    s_nop 1")
            e(f"    v_mfma_f32_16x16x32_bf16 v[{vAcc}:{vAcc+3}], v[{a}:{a+3}], v[{slot}:{slot+3}], v[{vAcc}:{vAcc+3}]")
        if issued < total:
            issue(issued); issued += 1
        if done_p < NL:
            pcalc(range(done_p, done_p + 2 * U)); done_p += 2 * U
        elif not l_done:
            l_done = True
            e(f"    v_add_f32 v{vL}, v{vL}, v{vL2}")
            xreduce(vL, "v_add_f32")
            e(f"    s_lshl_b32 s{sT}, s{sWave}, 3")
            e(f"    v_mov_b32 v{vT0}, s{sT}")
            e(f"    ds_write_b64 v{vT0}, v[{vM}:{vL}] offset:{LDS_ML}")
        if u == bar_u:
            assert l_done
            e("    s_waitcnt lgkmcnt(0)")
            e("    s_barrier")
    e("    s_mov_b32 exec_hi, 0")
    if stamps:
        stamp(4)
        e("    s_nop 5")
    else:
        e("    s_nop 6")
    e(f"    ds_write_b128 v{vOut}, v[{vAcc}:{vAcc+3}]")
    e("    s_waitcnt lgkmcnt(0)")
    e("    s_barrier")
    if stamps:
        e("    s_branch L_fin")
    else:
        e("    s_endpgm")
    vP = vS
    vW = vS + 16
    vX = vS + 24
    vB = vS + 32
    e("L_helper:")
    e(f"    s_load_dwordx2 s[{sW}:{sW+1}], s[0:1], 40")
    e(f"    s_load_dwordx2 s[{sD}:{sD+1}], s[0:1], 32")
    e(f"    s_load_dwordx2 s[{sO}:{sO+1}], s[0:1], 24")
    srd(sO, 16384); srd(sD, 256); srd(sW, 1 << 28)
    if stamps:
        e(f"    s_mov_b32 s{sWave}, {NW}")
    e(f"    s_getreg_b32 s{sXcc}, hwreg(HW_REG_XCC_ID, 0, 4)")
    e(f"    s_or_b32 s{sXcc}, s{sXcc}, 0x80")
    if gmap == 0:
        e(f"    s_lshr_b32 s{sT}, s{sHead}, 1")
        e(f"    s_sub_u32 s{sSlot}, s{sId}, s{sT}")
        e(f"    s_and_b32 s{sSlot}, s{sSlot}, 3")
    else:
        e(f"    s_and_b32 s{sSlot}, s{sId}, 3")
    e(f"    s_lshl_b32 s{sFlagOff}, s{sHead}, 2")
    e(f"    s_add_u32 s{sMb}, s{sFlagOff}, s{sSlot}")
    e(f"    s_mul_i32 s{sMb}, s{sMb}, {MBS}")
    e(f"    v_lshlrev_b32 v{vMb}, 4, v{vLane}")
    e(f"    v_mov_b32 v{vT0}, 0")
    e(f"    s_mov_b32 s{sCnt}, {SPIN}")
    e(f"    s_cmp_eq_u32 s{sSlot}, 0")
    e("    s_cbranch_scc1 L_consumer")

    def wave_weights():
        e(f"    ds_read_b128 v[{vW}:{vW+3}], v{vT0} offset:{LDS_ML}")
        e(f"    ds_read_b128 v[{vW+4}:{vW+7}], v{vT0} offset:{LDS_ML+16}")
        e("    s_waitcnt lgkmcnt(0)")
        e(f"    v_max_f32 v{vM}, v{vW}, v{vW+2}")
        e(f"    v_max3_f32 v{vM}, v{vM}, v{vW+4}, v{vW+6}")
        for w in range(4):
            e(f"    v_sub_f32 v{vW+2*w}, v{vW+2*w}, v{vM}")
        for w in range(4):
            e(f"    v_exp_f32 v{vW+2*w}, v{vW+2*w}")
        e(f"    v_mul_f32 v{vL}, v{vW}, v{vW+1}")
        for w in range(1, 4):
            e(f"    v_fmac_f32 v{vL}, v{vW+2*w}, v{vW+2*w+1}")
    def reduce():
        for w in range(4):
            e(f"    ds_read_b128 v[{vP+4*w}:{vP+4*w+3}], v{vMb} offset:{w*512}")
        for w in range(4):
            e(f"    s_waitcnt lgkmcnt({3-w})")
            for h in range(2):
                a = vAcc + 2 * h
                b = vP + 4 * w + 2 * h
                if w == 0:
                    e(f"    v_pk_mul_f32 v[{a}:{a+1}], v[{b}:{b+1}], v[{vW}:{vW+1}] op_sel_hi:[1,0]")
                else:
                    e(f"    v_pk_fma_f32 v[{a}:{a+1}], v[{b}:{b+1}], v[{vW+2*w}:{vW+2*w+1}], v[{a}:{a+1}] op_sel_hi:[1,0,1]")

    e("    s_waitcnt lgkmcnt(0)")
    if kbar >= 0:
        e("    s_barrier")
    e("    s_barrier")
    e("L_flagspin:")
    e(f"    buffer_load_dword v{vFlag}, v{vT0}, s[{sD}:{sD+3}], s{sFlagOff} offen sc1")
    wave_weights()
    e(f"    s_sub_u32 s{sCnt}, s{sCnt}, 1")
    e("    s_cbranch_scc1 L_flagok")
    e("    s_waitcnt vmcnt(0)")
    e(f"    v_readfirstlane_b32 s{sT}, v{vFlag}")
    e(f"    s_cmp_eq_u32 s{sT}, 0")
    e("    s_cbranch_scc1 L_flagspin")
    e("L_flagok:")
    stamp(1)
    e(f"    v_min_u32 v{vM}, -2, v{vM}")
    e(f"    v_min_u32 v{vL}, -2, v{vL}")
    e("    s_mov_b64 exec, 1")
    far = not fast
    def prod_body(polx):
        e(f"    buffer_store_dwordx2 v[{vM}:{vL}], v{vT0}, s[{sW}:{sW+3}], s{sMb} offen offset:512 {polx}".rstrip())
        e("    s_mov_b32 exec_lo, -1")
        if stamps:
            e("    s_waitcnt lgkmcnt(0)")
        e("    s_barrier")
        reduce()
        for r in range(4):
            e(f"    v_min_u32 v{vAcc+r}, -2, v{vAcc+r}")
        e(f"    buffer_store_dwordx4 v[{vAcc}:{vAcc+3}], v{vMb}, s[{sW}:{sW+3}], s{sMb} offen {polx}".rstrip())
        if stamps:
            stamp(3)
            e("    s_branch L_fin")
        else:
            e("    s_endpgm")
    if fast:
        e(f"    s_cmp_eq_u32 s{sT}, s{sXcc}")
        e("    s_cbranch_scc0 L_far")
        prod_body(spol)
        e("L_far:")
    prod_body("sc1")
    e("L_consumer:")
    for r in range(4):
        e(f"    v_mov_b32 v{vAcc+r}, -1")
    e(f"    v_mov_b32 v{vFlag}, s{sXcc}")
    e("    s_mov_b32 exec_hi, 0xff")
    e("    s_waitcnt lgkmcnt(0)")
    if kbar >= 0:
        e("    s_barrier")
    for p in range(1, 4):
        e(f"    buffer_store_dwordx4 v[{vAcc}:{vAcc+3}], v{vMb}, s[{sW}:{sW+3}], s{sMb} offen offset:{p*MBS} sc1")
    e(f"    v_and_b32 v{vX}, 15, v{vLane}")
    e(f"    v_lshrrev_b32 v{vT1}, 4, v{vLane}")
    e(f"    v_lshlrev_b32 v{vX}, 4, v{vX}")
    e(f"    v_lshl_add_u32 v{vOut}, v{vT1}, 3, v{vX}")
    e("    s_mov_b64 exec, 1")
    e("    s_waitcnt vmcnt(0)")
    e(f"    buffer_atomic_or v{vFlag}, v{vT0}, s[{sD}:{sD+3}], s{sFlagOff} offen sc1")
    e("    s_mov_b32 exec_lo, -1")
    e("    s_barrier")
    wave_weights()
    e("L_mlspin:")
    for p in range(1, 4):
        e(f"    buffer_load_dwordx2 v[{vX+2*p}:{vX+2*p+1}], v{vT0}, s[{sW}:{sW+3}], s{sMb} offen offset:{p*MBS+512} {ppol}")
    e(f"    s_sub_u32 s{sCnt}, s{sCnt}, 1")
    e("    s_waitcnt vmcnt(0)")
    e("    s_cbranch_scc1 L_mlok")
    e(f"    v_max3_u32 v{vT1}, v{vX+2}, v{vX+3}, v{vX+4}")
    e(f"    v_max3_u32 v{vT1}, v{vT1}, v{vX+5}, v{vX+6}")
    e(f"    v_max_u32 v{vT1}, v{vT1}, v{vX+7}")
    e(f"    v_cmp_eq_u32 vcc, -1, v{vT1}")
    e("    s_cbranch_vccnz L_mlspin")
    e("L_mlok:")
    e(f"    v_max_f32 v{vT1}, v{vM}, v{vX+2}")
    e(f"    v_max3_f32 v{vT1}, v{vT1}, v{vX+4}, v{vX+6}")
    e(f"    v_sub_f32 v{vX}, v{vM}, v{vT1}")
    for p in range(1, 4):
        e(f"    v_sub_f32 v{vX+2*p}, v{vX+2*p}, v{vT1}")
    for p in range(4):
        e(f"    v_exp_f32 v{vX+2*p}, v{vX+2*p}")
    e(f"    v_mul_f32 v{vL}, v{vX}, v{vL}")
    for p in range(1, 4):
        e(f"    v_fmac_f32 v{vL}, v{vX+2*p}, v{vX+2*p+1}")
    e(f"    v_rcp_f32 v{vL}, v{vL}")
    e(f"    s_mov_b32 s{sCnt}, {SPIN}")
    for p in range(4):
        e(f"    v_mul_f32 v{vX+2*p}, v{vX+2*p}, v{vL}")
    for w in range(4):
        e(f"    v_mul_f32 v{vW+2*w}, v{vW+2*w}, v{vX}")
    stamp(1)
    if stamps:
        e("    s_waitcnt lgkmcnt(0)")
    e("    s_barrier")
    def polls(st):
        for p in range(1, 4):
            b = vB + 12 * st + 4 * (p - 1)
            e(f"    buffer_load_dwordx4 v[{b}:{b+3}], v{vMb}, s[{sW}:{sW+3}], s{sMb} offen offset:{p*MBS} {ppol}")
    vR = vA
    def check(st, after):
        for p in range(1, 4):
            b = vB + 12 * st + 4 * (p - 1)
            e(f"    s_waitcnt vmcnt({after + 3 - p})")
            for h in range(2):
                src = vAcc + 2 * h if p == 1 else vR + 2 * h
                e(f"    v_pk_fma_f32 v[{vR+2*h}:{vR+2*h+1}], v[{b+2*h}:{b+2*h+1}], v[{vX+2*p}:{vX+2*p+1}], v[{src}:{src+1}] op_sel_hi:[1,0,1]")
            if p == 1:
                e(f"    v_max_u32 v{vT1}, v{b}, v{b+1}")
            else:
                e(f"    v_max3_u32 v{vT1}, v{vT1}, v{b}, v{b+1}")
            e(f"    v_max3_u32 v{vT1}, v{vT1}, v{b+2}, v{b+3}")
        e(f"    v_cmp_eq_u32 vcc, -1, v{vT1}")
        e(f"    v_cvt_pk_bf16_f32 v{vR}, v{vR}, v{vR+1}")
        e(f"    v_cvt_pk_bf16_f32 v{vR+1}, v{vR+2}, v{vR+3}")
    polls(0)
    reduce()
    for st in range(1, nsets):
        polls(st)
    e("L_poll:")
    for st in range(nsets):
        check(st, 3 * (nsets - 1))
        e("    s_cbranch_vccz L_got")
        polls(st)
    e(f"    s_sub_u32 s{sCnt}, s{sCnt}, 1")
    e("    s_cbranch_scc0 L_poll")
    e("L_got:")
    stamp(2)
    e(f"    buffer_store_dwordx2 v[{vR}:{vR+1}], v{vOut}, s[{sO}:{sO+3}], s{sOutOff} offen {opol}".rstrip())
    if stamps:
        stamp(3)
        e("    s_waitcnt vmcnt(0)")
        stamp(5)
        nsg = 100
        e("L_fin:")
        e("    s_mov_b64 exec, -1")
        e("    s_getreg_b32 s96, hwreg(HW_REG_XCC_ID)")
        e("    s_getreg_b32 s97, hwreg(HW_REG_HW_ID)")
        e("    s_waitcnt lgkmcnt(0)")
        for j in range(6):
            e(f"    v_mov_b32 v{vS+j}, s{84+2*j}")
        e(f"    v_mov_b32 v{vS+6}, s96")
        e(f"    v_mov_b32 v{vS+7}, s97")
        e(f"    s_mul_i32 s96, s2, {NW+1}")
        e(f"    s_add_u32 s96, s96, s{sWave}")
        e("    s_lshl_b32 s96, s96, 6")
        e("    s_add_u32 s96, s96, 0x100000")
        e(f"    v_mov_b32 v{vT0}, 0")
        e("    s_mov_b64 exec, 1")
        e(f"    buffer_store_dwordx4 v[{vS}:{vS+3}], v{vT0}, s[{sW}:{sW+3}], s96 offen")
        e(f"    buffer_store_dwordx4 v[{vS+4}:{vS+7}], v{vT0}, s[{sW}:{sW+3}], s96 offen offset:16")
    e("L_end:")
    e("    s_endpgm")
    assert vB + 12 * nsets <= nv
    nvg = (nv + 3) // 4 * 4
    e('.section .rodata,"a"')
    e(".p2align 6")
    e(f".amdhsa_kernel {NAME}")
    e(f"  .amdhsa_next_free_vgpr {nvg}")
    e(f"  .amdhsa_next_free_sgpr {nsg}")
    e(f"  .amdhsa_accum_offset {nvg}")
    e("  .amdhsa_group_segment_fixed_size 0")
    e("  .amdhsa_kernarg_size 48")
    e("  .amdhsa_user_sgpr_count 2")
    e("  .amdhsa_user_sgpr_kernarg_segment_ptr 1")
    e("  .amdhsa_system_sgpr_workgroup_id_x 1")
    e(".end_amdhsa_kernel")
    return "\n".join(o) + "\n"

if __name__ == "__main__":
    out = sys.argv[1]
    kw = {}
    for a in sys.argv[2:]:
        k, v = a.split("=")
        try:
            v = int(v, 0)
        except ValueError:
            pass
        kw[k] = v
    open(out, "w").write(gen(**kw))
```

```python
import sys, math, struct

HDR = """; Kernarg layout for this problem (48 bytes, ptrs only, base s[0:1]):
"""
NAME = "standalone__mha_softmax__decode_kernel"

def gen(U=4, DEP=2, pol="nt", stamps=0, rot=0, barback=8, gmap=1, hfirst=0, rmul=0x9E3779B1, rsh=20,
        fast=1, opol="", kbar=-1, nsets=2, ppol="sc1", spol="", nohelp=0, prate=4, early=1, dry=1, prepoll=1, yrot=0, vwarm=0, swarm=0, cwarm=0):
    NW = 4
    NSPLIT = 4
    NWG = 256
    NL = 64
    NU = NL // U
    RU = DEP + early
    R = U * RU
    RND = U * NW * 1024
    MBS = 1024
    o = []
    e = o.append
    sK, sV, sQ, sO, sD, sW = 4, 8, 12, 16, 20, 24
    sHead, sSlot, sWave, sC = 28, 29, 30, 31
    sOutOff, sXcc, sOff, sFlagOff, sCnt, sT, sMb, sPass = 32, 33, 34, 35, 36, 37, 38, 39
    sG = 40
    sId = 48
    nsg = 50
    vOff, vLane, vM, vL, vT0, vT1 = 1, 2, 4, 5, 6, 7
    vQ, vMask, vAcc, vA = 8, 12, 16, 20
    vMb, vFlag, vL2, vOut = 28, 29, 30, 31
    vS = 32
    vRing = vS + NL
    nv = vRing + 4 * R
    assert nv <= 256
    LDS_ML = NW * 512
    lds_bytes = LDS_ML + 64
    HW = 0 if hfirst else NW
    SPIN = 0x40000
    BOFF = 0x40000

    def stamp(j):
        if stamps:
            e(f"    s_memrealtime s[{84+2*j}:{85+2*j}]")

    def srd(r, sz):
        e(f"    s_mov_b32 s{r+2}, {hex(sz)}")
        e(f"    s_mov_b32 s{r+3}, 0x00020000")

    def issue(un):
        b = sK if un < NU else sV
        for i in range(U):
            slot = vRing + 4 * ((un % RU) * U + i)
            e(f"    buffer_load_dwordx4 v[{slot}:{slot+3}], v{vOff}, s[{b}:{b+3}], s{sOff} offen offset:{i*1024} {pol}".rstrip())
        if un + 1 < 2 * NU:
            if rot or yrot:
                e(f"    s_add_u32 s{sOff}, s{sOff}, {RND}")
                e(f"    s_and_b32 s{sOff}, s{sOff}, 0x3ffff")
            elif un + 1 == NU:
                e(f"    s_mov_b32 s{sOff}, 0")
            else:
                e(f"    s_add_u32 s{sOff}, s{sOff}, {RND}")

    e(HDR + f"; @launch grid=({NWG},1,1) block=({(NW+1)*64},1,1) lds={lds_bytes}")
    e('.amdgcn_target "amdgcn-amd-amdhsa--gfx950"')
    e(".text")
    e(f".globl {NAME}")
    e(".p2align 8")
    e(f".type {NAME},@function")
    e(f"{NAME}:")
    stamp(0)
    e(f"    s_load_dwordx2 s[{sQ}:{sQ+1}], s[0:1], 0")
    e(f"    s_load_dwordx2 s[{sK}:{sK+1}], s[0:1], 8")
    e(f"    s_load_dwordx2 s[{sV}:{sV+1}], s[0:1], 16")
    if stamps:
        e(f"    s_load_dwordx2 s[{sW}:{sW+1}], s[0:1], 40")
        srd(sW, 1 << 28)
        for j in range(1, 6):
            e(f"    s_mov_b32 s{84+2*j}, 0")
    e(f"    s_cmp_ge_u32 s2, {NWG}")
    e("    s_cbranch_scc1 L_end")
    e(f"    v_lshrrev_b32 v{vT0}, 6, v0")
    e(f"    v_and_b32 v{vLane}, 63, v0")
    e(f"    v_readfirstlane_b32 s{sWave}, v{vT0}")
    if gmap == 0:
        e(f"    s_mov_b32 s{sId}, s2")
    else:
        e(f"    s_and_b32 s{sId}, s2, 7")
        e(f"    s_lshl_b32 s{sId}, s{sId}, 5")
        e(f"    s_lshr_b32 s{sT}, s2, 3")
        e(f"    s_or_b32 s{sId}, s{sId}, s{sT}")
    e(f"    s_lshr_b32 s{sHead}, s{sId}, 2")
    e(f"    s_lshl_b32 s{sOutOff}, s{sHead}, 8")
    e(f"    s_cmp_eq_u32 s{sWave}, {HW}")
    e("    s_cbranch_scc1 L_helper")
    e(f"    s_lshl_b32 s3, s{sId}, 18")
    if hfirst:
        e(f"    s_sub_u32 s3, s3, {U*1024}")
    srd(sK, 1 << 26)
    srd(sQ, 16384)
    if rot:
        e(f"    s_mul_i32 s{sOff}, s2, {hex(rmul)}")
        e(f"    s_lshr_b32 s{sOff}, s{sOff}, {rsh - int(math.log2(RND))}")
        e(f"    s_and_b32 s{sOff}, s{sOff}, {hex(0x3ffff & ~(RND-1))}")
    elif yrot:
        e(f"    s_and_b32 s{sOff}, s{sHead}, 1")
        e(f"    s_lshl_b32 s{sOff}, s{sOff}, 17")
    else:
        e(f"    s_mov_b32 s{sOff}, 0")
    e(f"    v_lshl_add_u32 v{vOff}, v{vLane}, 4, s3")
    e(f"    v_lshl_add_u32 v{vOff}, v{vT0}, {int(math.log2(U*1024))}, v{vOff}")
    e(f"    v_and_b32 v{vT1}, 15, v0")
    e(f"    v_lshlrev_b32 v{vT1}, 4, v{vT1}")
    e("    s_waitcnt lgkmcnt(0)")
    stamp(1)
    e(f"    buffer_load_dwordx4 v[{vQ}:{vQ+3}], v{vT1}, s[{sQ}:{sQ+3}], s{sOutOff} offen")
    for un in range(DEP):
        issue(un)
    srd(sV, 1 << 26)
    c = math.log2(math.e) / math.sqrt(128.0)
    cbits = struct.unpack("<I", struct.pack("<f", c))[0]
    e(f"    s_mov_b32 s{sC}, {hex(cbits)}")
    if hfirst:
        e(f"    s_sub_u32 s{sWave}, s{sWave}, 1")
    e(f"    v_and_b32 v{vT0}, 1, v0")
    e(f"    v_lshlrev_b32 v{vT0}, 4, v{vT0}")
    e(f"    v_mov_b32 v{vT1}, 0xffff")
    e(f"    v_lshlrev_b32 v{vT0}, v{vT0}, v{vT1}")
    e(f"    v_bfe_u32 v{vT1}, v0, 1, 3")
    for r in range(4):
        e(f"    v_cmp_eq_u32 vcc, {r}, v{vT1}")
        e("    s_nop 1")
        e(f"    v_cndmask_b32 v{vMask+r}, 0, v{vT0}, vcc")
    e(f"    v_mov_b32 v{vM}, 0xff800000")
    e(f"    s_lshl_b32 s{sT}, s{sWave}, 9")
    e(f"    v_lshl_add_u32 v{vOut}, v{vLane}, 4, s{sT}")
    issued = DEP
    total = 2 * NU
    pend = []
    for un in range(NU):
        e(f"    s_waitcnt vmcnt({(issued - 1 - un) * U})")
        if un == 0:
            stamp(2)
        if early:
            issue(issued); issued += 1
        for r in range(4):
            for i in range(U):
                slot = vRing + 4 * ((un % RU) * U + i)
                d = vS + un * U + i
                src2 = "0" if r == 0 else f"v{d}"
                e(f"    v_dot2_f32_bf16 v{d}, v{slot+r}, v{vQ+r}, {src2}")
        if not early:
            issue(issued); issued += 1
        elif U < 4:
            e("    s_nop 1")
        if un == kbar:
            e("    s_barrier")
        pend += [vS + un * U + i for i in range(U)]
        if len(pend) >= 4:
            for sh in (8, 4, 2, 1):
                for r in pend:
                    e(f"    v_add_f32_dpp v{r}, v{r}, v{r} row_ror:{sh} row_mask:0xf bank_mask:0xf")
            for j in range(0, len(pend), 2):
                e(f"    v_max3_f32 v{vM}, v{vM}, v{pend[j]}, v{pend[j+1]}")
            pend = []
    assert not pend
    stamp(3)
    def xreduce(v, op):
        e(f"    v_mov_b32 v{vT0}, v{v}")
        e("    s_nop 1")
        e(f"    v_permlane32_swap_b32 v{v}, v{vT0}")
        e("    s_nop 1")
        e(f"    {op} v{v}, v{v}, v{vT0}")
        e(f"    v_mov_b32 v{vT0}, v{v}")
        e("    s_nop 1")
        e(f"    v_permlane16_swap_b32 v{v}, v{vT0}")
        e("    s_nop 1")
        e(f"    {op} v{v}, v{v}, v{vT0}")
    xreduce(vM, "v_max_f32")
    e(f"    v_mul_f32 v{vM}, s{sC}, v{vM}")
    for r in range(4):
        e(f"    v_mov_b32 v{vAcc+r}, 0")
    e(f"    v_mov_b32 v{vL}, 0")
    e(f"    v_mov_b32 v{vL2}, 0")
    def pcalc(idx):
        idx = [i for i in idx if i < NL]
        for i in idx:
            e(f"    v_fma_f32 v{vS+i}, v{vS+i}, s{sC}, -v{vM}")
        for i in idx:
            e(f"    v_exp_f32 v{vS+i}, v{vS+i}")
        if len(idx) == 1:
            e("    s_nop 0")
        for i in idx:
            l = vL if i % 2 == 0 else vL2
            e(f"    v_add_f32 v{l}, v{l}, v{vS+i}")
        for i in idx:
            e(f"    v_cvt_pk_bf16_f32 v{vS+i}, v{vS+i}, v{vS+i}")
    pcalc(range(0, U)); done_p = U
    l_done = False
    bar_u = NU - DEP - 1 - barback
    for u in range(NU):
        un = NU + u
        drain = issued >= total
        for i in range(U):
            a = vA + 4 * ((u * U + i) % 2)
            slot = vRing + 4 * ((un % RU) * U + i)
            for r in range(4):
                e(f"    v_and_b32 v{a+r}, v{vS+u*U+i}, v{vMask+r}")
            if drain:
                e("    s_nop 0")
                e(f"    s_waitcnt vmcnt({(issued - un) * U - 1 - i})")
            elif i == 0:
                e("    s_nop 0")
                e(f"    s_waitcnt vmcnt({(issued - 1 - un) * U})")
                if early:
                    issue(issued); issued += 1
            else:
                e("    s_nop 1")
            e(f"    v_mfma_f32_16x16x32_bf16 v[{vAcc}:{vAcc+3}], v[{a}:{a+3}], v[{slot}:{slot+3}], v[{vAcc}:{vAcc+3}]")
        if not early and issued < total:
            issue(issued); issued += 1
        if done_p < NL:
            pcalc(range(done_p, done_p + prate * U)); done_p += prate * U
        elif not l_done:
            l_done = True
            e(f"    v_add_f32 v{vL}, v{vL}, v{vL2}")
            xreduce(vL, "v_add_f32")
            e(f"    s_lshl_b32 s{sT}, s{sWave}, 3")
            e(f"    v_mov_b32 v{vT0}, s{sT}")
            e(f"    ds_write_b64 v{vT0}, v[{vM}:{vL}] offset:{LDS_ML}")
        if u == bar_u:
            assert l_done
            e("    s_waitcnt lgkmcnt(0)")
            e("    s_barrier")
    e("    s_mov_b32 exec_hi, 0")
    if stamps:
        stamp(4)
        e("    s_nop 5")
    else:
        e("    s_nop 6")
    e(f"    ds_write_b128 v{vOut}, v[{vAcc}:{vAcc+3}]")
    e("    s_waitcnt lgkmcnt(0)")
    e("    s_barrier")
    if stamps:
        e("    s_branch L_fin")
    else:
        e("    s_endpgm")
    vP = vS
    vW = vS + 16
    vX = vS + 24
    vB = vS + 32
    e("L_helper:")
    e(f"    s_load_dwordx2 s[{sW}:{sW+1}], s[0:1], 40")
    e(f"    s_load_dwordx2 s[{sD}:{sD+1}], s[0:1], 32")
    e(f"    s_load_dwordx2 s[{sO}:{sO+1}], s[0:1], 24")
    srd(sO, 16384); srd(sD, 256); srd(sW, 1 << 28)
    if stamps:
        e(f"    s_mov_b32 s{sWave}, {NW}")
    if nohelp:
        e("    s_branch L_fin")
    e(f"    s_getreg_b32 s{sXcc}, hwreg(HW_REG_XCC_ID, 0, 4)")
    e(f"    s_or_b32 s{sXcc}, s{sXcc}, 0x80")
    if gmap == 0:
        e(f"    s_lshr_b32 s{sT}, s{sHead}, 1")
        e(f"    s_sub_u32 s{sSlot}, s{sId}, s{sT}")
        e(f"    s_and_b32 s{sSlot}, s{sSlot}, 3")
    else:
        e(f"    s_and_b32 s{sSlot}, s{sId}, 3")
    e(f"    s_lshl_b32 s{sFlagOff}, s{sHead}, 2")
    e(f"    s_add_u32 s{sMb}, s{sFlagOff}, s{sSlot}")
    e(f"    s_mul_i32 s{sMb}, s{sMb}, {MBS}")
    e(f"    v_lshlrev_b32 v{vMb}, 4, v{vLane}")
    e(f"    v_mov_b32 v{vT0}, 0")
    e(f"    s_mov_b32 s{sCnt}, {SPIN}")
    if cwarm:
        e(f"    s_getpc_b64 s[{sG+4}:{sG+5}]")
        e("L_pc:")
        e(f"    s_sub_u32 s{sG+4}, s{sG+4}, L_pc-{NAME}")
        e(f"    s_subb_u32 s{sG+5}, s{sG+5}, 0")
        e(f"    s_mov_b32 s{sG+6}, L_codeend-{NAME}")
        e(f"    s_mov_b32 s{sG+7}, 0x00020000")
        e(f"    v_lshlrev_b32 v{vT1}, 7, v{vLane}")
        if cwarm == 1:
            e(f"    s_lshr_b32 s{sT}, s2, 3")
            e(f"    s_lshl_b32 s{sT}, s{sT}, 9")
            e("    s_mov_b64 exec, 15")
            e(f"    buffer_load_dword v{vL2}, v{vT1}, s[{sG+4}:{sG+7}], s{sT} offen")
            e("    s_mov_b64 exec, -1")
        else:
            e(f"    s_movk_i32 s{sT}, 0x2000")
            e(f"    buffer_load_dword v{vL2}, v{vT1}, s[{sG+4}:{sG+7}], 0 offen")
            e(f"    buffer_load_dword v{vL2}, v{vT1}, s[{sG+4}:{sG+7}], s{sT} offen")
    if vwarm or swarm:
        e(f"    s_lshl_b32 s3, s{sId}, 18")
        e("    s_waitcnt lgkmcnt(0)")
    if swarm:
        e(f"    s_add_u32 s{sV}, s{sV}, s3")
        e(f"    s_addc_u32 s{sV+1}, s{sV+1}, 0")
        for i in range(swarm):
            e(f"    s_load_dword s{sG+4+i}, s[{sV}:{sV+1}], {hex(i * (0x40000 // swarm))}")
    if vwarm:
        srd(sV, 1 << 26)
        e(f"    v_lshlrev_b32 v{vT1}, {18 - int(math.log2(vwarm))}, v{vLane}")
        e(f"    s_mov_b64 exec, {(1 << vwarm) - 1}")
        e(f"    buffer_load_dword v{vL2}, v{vT1}, s[{sV}:{sV+3}], s3 offen {pol}")
        e("    s_mov_b64 exec, -1")
    e(f"    s_cmp_eq_u32 s{sSlot}, 0")
    e("    s_cbranch_scc1 L_consumer")

    def wave_weights():
        e(f"    ds_read_b128 v[{vW}:{vW+3}], v{vT0} offset:{LDS_ML}")
        e(f"    ds_read_b128 v[{vW+4}:{vW+7}], v{vT0} offset:{LDS_ML+16}")
        e("    s_waitcnt lgkmcnt(0)")
        e(f"    v_max_f32 v{vM}, v{vW}, v{vW+2}")
        e(f"    v_max3_f32 v{vM}, v{vM}, v{vW+4}, v{vW+6}")
        for w in range(4):
            e(f"    v_sub_f32 v{vW+2*w}, v{vW+2*w}, v{vM}")
        for w in range(4):
            e(f"    v_exp_f32 v{vW+2*w}, v{vW+2*w}")
        e(f"    v_mul_f32 v{vL}, v{vW}, v{vW+1}")
        for w in range(1, 4):
            e(f"    v_fmac_f32 v{vL}, v{vW+2*w}, v{vW+2*w+1}")
    def reduce():
        for w in range(4):
            e(f"    ds_read_b128 v[{vP+4*w}:{vP+4*w+3}], v{vMb} offset:{w*512}")
        for w in range(4):
            e(f"    s_waitcnt lgkmcnt({3-w})")
            for h in range(2):
                a = vAcc + 2 * h
                b = vP + 4 * w + 2 * h
                if w == 0:
                    e(f"    v_pk_mul_f32 v[{a}:{a+1}], v[{b}:{b+1}], v[{vW}:{vW+1}] op_sel_hi:[1,0]")
                else:
                    e(f"    v_pk_fma_f32 v[{a}:{a+1}], v[{b}:{b+1}], v[{vW+2*w}:{vW+2*w+1}], v[{a}:{a+1}] op_sel_hi:[1,0,1]")

    e("    s_waitcnt lgkmcnt(0)")
    if kbar >= 0:
        e("    s_barrier")
    e("    s_barrier")
    e("L_flagspin:")
    e(f"    buffer_load_dword v{vFlag}, v{vT0}, s[{sD}:{sD+3}], s{sFlagOff} offen sc1")
    wave_weights()
    e(f"    s_sub_u32 s{sCnt}, s{sCnt}, 1")
    e("    s_cbranch_scc1 L_flagok")
    e("    s_waitcnt vmcnt(0)")
    e(f"    v_readfirstlane_b32 s{sT}, v{vFlag}")
    e(f"    s_cmp_eq_u32 s{sT}, 0")
    e("    s_cbranch_scc1 L_flagspin")
    e("L_flagok:")
    stamp(1)
    e(f"    v_min_u32 v{vM}, -2, v{vM}")
    e(f"    v_min_u32 v{vL}, -2, v{vL}")
    e(f"    s_and_b32 s{sT}, s{sT}, 0xff")
    e("    s_mov_b64 exec, 1")
    def fin_prod():
        if stamps:
            stamp(3)
            e("    s_branch L_fin")
        else:
            e("    s_endpgm")
    def mins():
        for r in range(4):
            e(f"    v_min_u32 v{vAcc+r}, -2, v{vAcc+r}")
    if fast:
        e(f"    s_cmp_eq_u32 s{sT}, s{sXcc}")
        e("    s_cbranch_scc0 L_far")
        e(f"    buffer_store_dwordx2 v[{vM}:{vL}], v{vT0}, s[{sW}:{sW+3}], s{sMb} offen offset:512 {spol}".rstrip())
        e("    s_mov_b32 exec_lo, -1")
        if stamps:
            e("    s_waitcnt lgkmcnt(0)")
        if dry:
            e("    s_branch L_pbody")
            e("L_pbar:")
            e("    s_cmp_eq_u32 0, 1")
        e("    s_barrier")
        e("L_pbody:")
        reduce()
        mins()
        if dry:
            e("    s_cbranch_scc1 L_pbar")
        e(f"    buffer_store_dwordx4 v[{vAcc}:{vAcc+3}], v{vMb}, s[{sW}:{sW+3}], s{sMb} offen {spol}".rstrip())
        fin_prod()
    e("L_far:")
    e(f"    s_add_u32 s{sMb}, s{sMb}, {hex(BOFF)}")
    e(f"    buffer_store_dwordx2 v[{vM}:{vL}], v{vT0}, s[{sW}:{sW+3}], s{sMb} offen offset:512 sc1")
    e("    s_mov_b32 exec_lo, -1")
    e(f"    s_lshl_b32 s{sT}, 0x100, s{sSlot}")
    e(f"    v_mov_b32 v{vFlag}, s{sT}")
    if stamps:
        e("    s_waitcnt lgkmcnt(0)")
    e("    s_barrier")
    reduce()
    mins()
    e(f"    buffer_store_dwordx4 v[{vAcc}:{vAcc+3}], v{vMb}, s[{sW}:{sW+3}], s{sMb} offen sc1")
    e("    s_mov_b64 exec, 1")
    e("    s_waitcnt vmcnt(0)")
    e(f"    buffer_atomic_or v{vFlag}, v{vT0}, s[{sD}:{sD+3}], s{sFlagOff} offen sc1")
    fin_prod()
    e("L_consumer:")
    for r in range(4):
        e(f"    v_mov_b32 v{vAcc+r}, -1")
    e(f"    v_mov_b32 v{vFlag}, s{sXcc}")
    e("    s_mov_b32 exec_hi, 0xff")
    e("    s_waitcnt lgkmcnt(0)")
    if kbar >= 0:
        e("    s_barrier")
    for p in range(1, 4):
        e(f"    buffer_store_dwordx4 v[{vAcc}:{vAcc+3}], v{vMb}, s[{sW}:{sW+3}], s{sMb} offen offset:{p*MBS}")
    e(f"    v_and_b32 v{vX}, 15, v{vLane}")
    e(f"    v_lshrrev_b32 v{vT1}, 4, v{vLane}")
    e(f"    v_lshlrev_b32 v{vX}, 4, v{vX}")
    e(f"    v_lshl_add_u32 v{vOut}, v{vT1}, 3, v{vX}")
    e("    s_mov_b64 exec, 1")
    e("    s_waitcnt vmcnt(0)")
    e(f"    buffer_atomic_swap v{vFlag}, v{vT0}, s[{sD}:{sD+3}], s{sFlagOff} offen sc1")
    e("    s_mov_b32 exec_lo, -1")
    e(f"    s_add_u32 s{sG}, s{sMb}, {hex(BOFF)}")
    e(f"    s_mov_b32 s{sT}, 0")
    e("    s_barrier")
    wave_weights()
    e("L_mlspin:")
    for p in range(1, 4):
        e(f"    s_bitcmp1_b32 s{sT}, {8+p}")
        e(f"    s_cselect_b32 s{sG+p}, s{sG}, s{sMb}")
    for p in range(1, 4):
        e(f"    buffer_load_dwordx2 v[{vX+2*p}:{vX+2*p+1}], v{vT0}, s[{sW}:{sW+3}], s{sG+p} offen offset:{p*MBS+512} {ppol}")
    e(f"    buffer_load_dword v{vFlag}, v{vT0}, s[{sD}:{sD+3}], s{sFlagOff} offen sc1")
    e(f"    s_sub_u32 s{sCnt}, s{sCnt}, 1")
    e("    s_waitcnt vmcnt(0)")
    e("    s_cbranch_scc1 L_mlok")
    e(f"    v_readfirstlane_b32 s{sT}, v{vFlag}")
    e(f"    v_max3_u32 v{vT1}, v{vX+2}, v{vX+3}, v{vX+4}")
    e(f"    v_max3_u32 v{vT1}, v{vT1}, v{vX+5}, v{vX+6}")
    e(f"    v_max_u32 v{vT1}, v{vT1}, v{vX+7}")
    e(f"    v_cmp_eq_u32 vcc, -1, v{vT1}")
    e("    s_cbranch_vccnz L_mlspin")
    e("L_mlok:")
    e(f"    v_max_f32 v{vT1}, v{vM}, v{vX+2}")
    e(f"    v_max3_f32 v{vT1}, v{vT1}, v{vX+4}, v{vX+6}")
    e(f"    v_sub_f32 v{vX}, v{vM}, v{vT1}")
    for p in range(1, 4):
        e(f"    v_sub_f32 v{vX+2*p}, v{vX+2*p}, v{vT1}")
    for p in range(4):
        e(f"    v_exp_f32 v{vX+2*p}, v{vX+2*p}")
    e(f"    v_mul_f32 v{vL}, v{vX}, v{vL}")
    for p in range(1, 4):
        e(f"    v_fmac_f32 v{vL}, v{vX+2*p}, v{vX+2*p+1}")
    e(f"    v_rcp_f32 v{vL}, v{vL}")
    e(f"    s_mov_b32 s{sCnt}, {SPIN}")
    for p in range(4):
        e(f"    v_mul_f32 v{vX+2*p}, v{vX+2*p}, v{vL}")
    for w in range(4):
        e(f"    v_mul_f32 v{vW+2*w}, v{vW+2*w}, v{vX}")
    def polls(st):
        for p in range(1, 4):
            b = vB + 12 * st + 4 * (p - 1)
            e(f"    buffer_load_dwordx4 v[{b}:{b+3}], v{vMb}, s[{sW}:{sW+3}], s{sG+p} offen offset:{p*MBS} {ppol}")
    vR = vA
    def check(st, after):
        for p in range(1, 4):
            b = vB + 12 * st + 4 * (p - 1)
            e(f"    s_waitcnt vmcnt({after + 3 - p})")
            for h in range(2):
                src = vAcc + 2 * h if p == 1 else vR + 2 * h
                e(f"    v_pk_fma_f32 v[{vR+2*h}:{vR+2*h+1}], v[{b+2*h}:{b+2*h+1}], v[{vX+2*p}:{vX+2*p+1}], v[{src}:{src+1}] op_sel_hi:[1,0,1]")
            if p == 1:
                e(f"    v_max_u32 v{vT1}, v{b}, v{b+1}")
            else:
                e(f"    v_max3_u32 v{vT1}, v{vT1}, v{b}, v{b+1}")
            e(f"    v_max3_u32 v{vT1}, v{vT1}, v{b+2}, v{b+3}")
        e(f"    v_cmp_eq_u32 vcc, -1, v{vT1}")
        e(f"    v_cvt_pk_bf16_f32 v{vR}, v{vR}, v{vR+1}")
        e(f"    v_cvt_pk_bf16_f32 v{vR+1}, v{vR+2}, v{vR+3}")
    if prepoll:
        e(f"    s_mov_b32 s{sPass}, 1")
        e("    s_branch L_cbody")
        e("L_cbar:")
        e(f"    s_mov_b32 s{sPass}, 0")
        e("    s_waitcnt vmcnt(0)")
    stamp(1)
    if stamps:
        e("    s_waitcnt lgkmcnt(0)")
    e("    s_barrier")
    e("L_cbody:")
    polls(0)
    reduce()
    for st in range(1, nsets):
        polls(st)
    if prepoll:
        e(f"    s_cmp_eq_u32 s{sPass}, 1")
    e("L_poll:")
    for st in range(nsets):
        check(st, 3 * (nsets - 1))
        if prepoll and st == 0:
            e("    s_cbranch_scc1 L_cbar")
        e("    s_cbranch_vccz L_got")
        polls(st)
    e(f"    s_sub_u32 s{sCnt}, s{sCnt}, 1")
    e("    s_cbranch_scc0 L_poll")
    e("L_got:")
    stamp(2)
    e(f"    buffer_store_dwordx2 v[{vR}:{vR+1}], v{vOut}, s[{sO}:{sO+3}], s{sOutOff} offen {opol}".rstrip())
    if stamps:
        stamp(3)
        e("    s_waitcnt vmcnt(0)")
        stamp(5)
        nsg = 100
        e("L_fin:")
        e("    s_mov_b64 exec, -1")
        e("    s_getreg_b32 s96, hwreg(HW_REG_XCC_ID)")
        e("    s_getreg_b32 s97, hwreg(HW_REG_HW_ID)")
        e("    s_waitcnt lgkmcnt(0)")
        for j in range(6):
            e(f"    v_mov_b32 v{vS+j}, s{84+2*j}")
        e(f"    v_mov_b32 v{vS+6}, s96")
        e(f"    v_mov_b32 v{vS+7}, s97")
        e(f"    s_mul_i32 s96, s2, {NW+1}")
        e(f"    s_add_u32 s96, s96, s{sWave}")
        e("    s_lshl_b32 s96, s96, 6")
        e("    s_add_u32 s96, s96, 0x100000")
        e(f"    v_mov_b32 v{vT0}, 0")
        e("    s_mov_b64 exec, 1")
        e(f"    buffer_store_dwordx4 v[{vS}:{vS+3}], v{vT0}, s[{sW}:{sW+3}], s96 offen")
        e(f"    buffer_store_dwordx4 v[{vS+4}:{vS+7}], v{vT0}, s[{sW}:{sW+3}], s96 offen offset:16")
    e("L_end:")
    e("    s_endpgm")
    e("L_codeend:")
    assert vB + 12 * nsets <= nv
    nvg = (nv + 3) // 4 * 4
    e('.section .rodata,"a"')
    e(".p2align 6")
    e(f".amdhsa_kernel {NAME}")
    e(f"  .amdhsa_next_free_vgpr {nvg}")
    e(f"  .amdhsa_next_free_sgpr {nsg}")
    e(f"  .amdhsa_accum_offset {nvg}")
    e("  .amdhsa_group_segment_fixed_size 0")
    e("  .amdhsa_kernarg_size 48")
    e("  .amdhsa_user_sgpr_count 2")
    e("  .amdhsa_user_sgpr_kernarg_segment_ptr 1")
    e("  .amdhsa_system_sgpr_workgroup_id_x 1")
    e(".end_amdhsa_kernel")
    return "\n".join(o) + "\n"

if __name__ == "__main__":
    out = sys.argv[1]
    kw = {}
    for a in sys.argv[2:]:
        k, v = a.split("=")
        try:
            v = int(v, 0)
        except ValueError:
            pass
        kw[k] = v
    open(out, "w").write(gen(**kw))
```

```python
import sys, math, struct

HDR = """; Kernarg layout for this problem (48 bytes, ptrs only, base s[0:1]):
"""
NAME = "standalone__mha_softmax__decode_kernel"

def gen(U=4, DEP=2, pol="nt", stamps=0, rot=0, barback=8, gmap=1, hfirst=0, rmul=0x9E3779B1, rsh=20,
        fast=1, opol="", kbar=-1, nsets=2, ppol="sc1", spol="", nohelp=0, prate=4, early=1, dry=1, prepoll=1, yrot=0, vwarm=0, swarm=0, cwarm=0, nok=0, nov=0, nobar=0, noq=0, pat=None, hstop=0, preload=None):
    NW = 4
    NSPLIT = 4
    NWG = 256
    NL = 64
    NU = NL // U
    RU = DEP + early
    R = U * RU
    RND = U * NW * 1024
    MBS = 1024
    o = []
    e = o.append
    sK, sV, sQ, sO, sD, sW = 4, 8, 12, 16, 20, 24
    sHead, sSlot, sWave, sC = 28, 29, 30, 31
    sOutOff, sXcc, sOff, sFlagOff, sCnt, sT, sMb, sPass = 32, 33, 34, 35, 36, 37, 38, 39
    sG = 40
    sId = 48
    nsg = 50
    vOff, vLane, vM, vL, vT0, vT1 = 1, 2, 4, 5, 6, 7
    vQ, vMask, vAcc, vA = 8, 12, 16, 20
    vMb, vFlag, vL2, vOut = 28, 29, 30, 31
    vS = 32
    vRing = vS + NL
    nv = vRing + 4 * R
    assert nv <= 256
    LDS_ML = NW * 512
    lds_bytes = LDS_ML + 64
    HW = 0 if hfirst else NW
    SPIN = 0x40000
    BOFF = 0x40000

    def stamp(j):
        if stamps:
            e(f"    s_memrealtime s[{84+2*j}:{85+2*j}]")

    def srd(r, sz):
        e(f"    s_mov_b32 s{r+2}, {hex(sz)}")
        e(f"    s_mov_b32 s{r+3}, 0x00020000")

    def issue(un):
        b = sK if un < NU else sV
        for i in range(U):
            slot = vRing + 4 * ((un % RU) * U + i)
            e(f"    buffer_load_dwordx4 v[{slot}:{slot+3}], v{vOff}, s[{b}:{b+3}], s{sOff} offen offset:{i*1024} {pol}".rstrip())
        if un + 1 < 2 * NU:
            if pat:
                e(f"    s_add_u32 s{sOff}, s{sOff}, {4*RND}")
                e(f"    s_and_b32 s{sOff}, s{sOff}, 0xfffff")
            elif rot or yrot:
                e(f"    s_add_u32 s{sOff}, s{sOff}, {RND}")
                e(f"    s_and_b32 s{sOff}, s{sOff}, 0x3ffff")
            elif un + 1 == NU:
                e(f"    s_mov_b32 s{sOff}, 0")
            else:
                e(f"    s_add_u32 s{sOff}, s{sOff}, {RND}")

    e(HDR + f"; @launch grid=({NWG},1,1) block=({(NW+1)*64},1,1) lds={lds_bytes}")
    e('.amdgcn_target "amdgcn-amd-amdhsa--gfx950"')
    e(".text")
    e(f".globl {NAME}")
    e(".p2align 8")
    e(f".type {NAME},@function")
    e(f"{NAME}:")
    stamp(0)
    e(f"    s_load_dwordx2 s[{sQ}:{sQ+1}], s[0:1], 0")
    e(f"    s_load_dwordx2 s[{sK}:{sK+1}], s[0:1], 8")
    e(f"    s_load_dwordx2 s[{sV}:{sV+1}], s[0:1], 16")
    if stamps:
        e(f"    s_load_dwordx2 s[{sW}:{sW+1}], s[0:1], 40")
        srd(sW, 1 << 28)
        for j in range(1, 6):
            e(f"    s_mov_b32 s{84+2*j}, 0")
    e(f"    s_cmp_ge_u32 s2, {NWG}")
    e("    s_cbranch_scc1 L_end")
    e(f"    v_lshrrev_b32 v{vT0}, 6, v0")
    e(f"    v_and_b32 v{vLane}, 63, v0")
    e(f"    v_readfirstlane_b32 s{sWave}, v{vT0}")
    if gmap == 0:
        e(f"    s_mov_b32 s{sId}, s2")
    else:
        e(f"    s_and_b32 s{sId}, s2, 7")
        e(f"    s_lshl_b32 s{sId}, s{sId}, 5")
        e(f"    s_lshr_b32 s{sT}, s2, 3")
        e(f"    s_or_b32 s{sId}, s{sId}, s{sT}")
    e(f"    s_lshr_b32 s{sHead}, s{sId}, 2")
    e(f"    s_lshl_b32 s{sOutOff}, s{sHead}, 8")
    e(f"    s_cmp_eq_u32 s{sWave}, {HW}")
    e("    s_cbranch_scc1 L_helper")
    if pat:
        e(f"    s_lshl_b32 s3, s{sHead}, 20")
    else:
        e(f"    s_lshl_b32 s3, s{sId}, 18")
    if hfirst:
        e(f"    s_sub_u32 s3, s3, {U*1024}")
    srd(sK, 1 << 26)
    srd(sQ, 16384)
    if pat:
        ax, ay = [int(x) for x in pat.split(",")]
        e(f"    s_lshr_b32 s{sOff}, s{sHead}, 3")
        e(f"    s_mul_i32 s{sOff}, s{sOff}, {ax}")
        e(f"    s_and_b32 s{sT}, s{sHead}, 7")
        e(f"    s_mul_i32 s{sT}, s{sT}, {ay}")
        e(f"    s_add_u32 s{sOff}, s{sOff}, s{sT}")
        e(f"    s_and_b32 s{sT}, s{sId}, 3")
        e(f"    s_add_u32 s{sOff}, s{sOff}, s{sT}")
        e(f"    s_lshl_b32 s{sOff}, s{sOff}, {int(math.log2(RND))}")
        e(f"    s_and_b32 s{sOff}, s{sOff}, 0xfffff")
    elif rot:
        e(f"    s_mul_i32 s{sOff}, s2, {hex(rmul)}")
        e(f"    s_lshr_b32 s{sOff}, s{sOff}, {rsh - int(math.log2(RND))}")
        e(f"    s_and_b32 s{sOff}, s{sOff}, {hex(0x3ffff & ~(RND-1))}")
    elif yrot:
        e(f"    s_and_b32 s{sOff}, s{sHead}, 1")
        e(f"    s_lshl_b32 s{sOff}, s{sOff}, 17")
    else:
        e(f"    s_mov_b32 s{sOff}, 0")
    e(f"    v_lshl_add_u32 v{vOff}, v{vLane}, 4, s3")
    e(f"    v_lshl_add_u32 v{vOff}, v{vT0}, {int(math.log2(U*1024))}, v{vOff}")
    e(f"    v_and_b32 v{vT1}, 15, v0")
    e(f"    v_lshlrev_b32 v{vT1}, 4, v{vT1}")
    e("    s_waitcnt lgkmcnt(0)")
    stamp(1)
    if not noq: e(f"    buffer_load_dwordx4 v[{vQ}:{vQ+3}], v{vT1}, s[{sQ}:{sQ+3}], s{sOutOff} offen")
    for un in range(DEP):
        issue(un)
    srd(sV, 1 << 26)
    c = math.log2(math.e) / math.sqrt(128.0)
    cbits = struct.unpack("<I", struct.pack("<f", c))[0]
    e(f"    s_mov_b32 s{sC}, {hex(cbits)}")
    if hfirst:
        e(f"    s_sub_u32 s{sWave}, s{sWave}, 1")
    e(f"    v_and_b32 v{vT0}, 1, v0")
    e(f"    v_lshlrev_b32 v{vT0}, 4, v{vT0}")
    e(f"    v_mov_b32 v{vT1}, 0xffff")
    e(f"    v_lshlrev_b32 v{vT0}, v{vT0}, v{vT1}")
    e(f"    v_bfe_u32 v{vT1}, v0, 1, 3")
    for r in range(4):
        e(f"    v_cmp_eq_u32 vcc, {r}, v{vT1}")
        e("    s_nop 1")
        e(f"    v_cndmask_b32 v{vMask+r}, 0, v{vT0}, vcc")
    e(f"    v_mov_b32 v{vM}, 0xff800000")
    e(f"    s_lshl_b32 s{sT}, s{sWave}, 9")
    e(f"    v_lshl_add_u32 v{vOut}, v{vLane}, 4, s{sT}")
    issued = DEP
    total = 2 * NU
    pend = []
    for un in range(NU):
        e(f"    s_waitcnt vmcnt({(issued - 1 - un) * U})")
        if un == 0:
            stamp(2)
        if early:
            issue(issued); issued += 1
        for r in range(4):
            for i in range(U):
                slot = vRing + 4 * ((un % RU) * U + i)
                d = vS + un * U + i
                src2 = "0" if r == 0 else f"v{d}"
                if not nok:
                    e(f"    v_dot2_f32_bf16 v{d}, v{slot+r}, v{vQ+r}, {src2}")
        if not early:
            issue(issued); issued += 1
        elif U < 4:
            e("    s_nop 1")
        if un == kbar:
            e("    s_barrier")
        pend += [vS + un * U + i for i in range(U)]
        if nok:
            pend = []
        if len(pend) >= 4:
            for sh in (8, 4, 2, 1):
                for r in pend:
                    e(f"    v_add_f32_dpp v{r}, v{r}, v{r} row_ror:{sh} row_mask:0xf bank_mask:0xf")
            for j in range(0, len(pend), 2):
                e(f"    v_max3_f32 v{vM}, v{vM}, v{pend[j]}, v{pend[j+1]}")
            pend = []
    assert not pend
    stamp(3)
    def xreduce(v, op):
        e(f"    v_mov_b32 v{vT0}, v{v}")
        e("    s_nop 1")
        e(f"    v_permlane32_swap_b32 v{v}, v{vT0}")
        e("    s_nop 1")
        e(f"    {op} v{v}, v{v}, v{vT0}")
        e(f"    v_mov_b32 v{vT0}, v{v}")
        e("    s_nop 1")
        e(f"    v_permlane16_swap_b32 v{v}, v{vT0}")
        e("    s_nop 1")
        e(f"    {op} v{v}, v{v}, v{vT0}")
    xreduce(vM, "v_max_f32")
    e(f"    v_mul_f32 v{vM}, s{sC}, v{vM}")
    for r in range(4):
        e(f"    v_mov_b32 v{vAcc+r}, 0")
    e(f"    v_mov_b32 v{vL}, 0")
    e(f"    v_mov_b32 v{vL2}, 0")
    def pcalc(idx):
        idx = [i for i in idx if i < NL and not nov]
        for i in idx:
            e(f"    v_fma_f32 v{vS+i}, v{vS+i}, s{sC}, -v{vM}")
        for i in idx:
            e(f"    v_exp_f32 v{vS+i}, v{vS+i}")
        if len(idx) == 1:
            e("    s_nop 0")
        for i in idx:
            l = vL if i % 2 == 0 else vL2
            e(f"    v_add_f32 v{l}, v{l}, v{vS+i}")
        for i in idx:
            e(f"    v_cvt_pk_bf16_f32 v{vS+i}, v{vS+i}, v{vS+i}")
    pcalc(range(0, U)); done_p = U
    l_done = False
    bar_u = NU - DEP - 1 - barback
    for u in range(NU):
        un = NU + u
        drain = issued >= total
        for i in range(U):
            a = vA + 4 * ((u * U + i) % 2)
            slot = vRing + 4 * ((un % RU) * U + i)
            for r in range(0 if nov else 4):
                e(f"    v_and_b32 v{a+r}, v{vS+u*U+i}, v{vMask+r}")
            if drain:
                e("    s_nop 0")
                e(f"    s_waitcnt vmcnt({(issued - un) * U - 1 - i})")
            elif i == 0:
                e("    s_nop 0")
                e(f"    s_waitcnt vmcnt({(issued - 1 - un) * U})")
                if early:
                    issue(issued); issued += 1
            else:
                e("    s_nop 1")
            if not nov: e(f"    v_mfma_f32_16x16x32_bf16 v[{vAcc}:{vAcc+3}], v[{a}:{a+3}], v[{slot}:{slot+3}], v[{vAcc}:{vAcc+3}]")
        if not early and issued < total:
            issue(issued); issued += 1
        if done_p < NL:
            pcalc(range(done_p, done_p + prate * U)); done_p += prate * U
        elif not l_done:
            l_done = True
            e(f"    v_add_f32 v{vL}, v{vL}, v{vL2}")
            xreduce(vL, "v_add_f32")
            e(f"    s_lshl_b32 s{sT}, s{sWave}, 3")
            e(f"    v_mov_b32 v{vT0}, s{sT}")
            e(f"    ds_write_b64 v{vT0}, v[{vM}:{vL}] offset:{LDS_ML}")
        if u == bar_u:
            assert l_done
            e("    s_waitcnt lgkmcnt(0)")
            if not nobar: e("    s_barrier")
    e("    s_mov_b32 exec_hi, 0")
    if stamps:
        stamp(4)
        e("    s_nop 5")
    else:
        e("    s_nop 6")
    e(f"    ds_write_b128 v{vOut}, v[{vAcc}:{vAcc+3}]")
    e("    s_waitcnt lgkmcnt(0)")
    e("    s_barrier")
    if stamps:
        e("    s_branch L_fin")
    else:
        e("    s_endpgm")
    vP = vS
    vW = vS + 16
    vX = vS + 24
    vB = vS + 32
    e("L_helper:")
    e(f"    s_load_dwordx2 s[{sW}:{sW+1}], s[0:1], 40")
    e(f"    s_load_dwordx2 s[{sD}:{sD+1}], s[0:1], 32")
    e(f"    s_load_dwordx2 s[{sO}:{sO+1}], s[0:1], 24")
    srd(sO, 16384); srd(sD, 256); srd(sW, 1 << 28)
    if stamps:
        e(f"    s_mov_b32 s{sWave}, {NW}")
    if nohelp:
        e("    s_branch L_fin")
    e(f"    s_getreg_b32 s{sXcc}, hwreg(HW_REG_XCC_ID, 0, 4)")
    e(f"    s_or_b32 s{sXcc}, s{sXcc}, 0x80")
    if gmap == 0:
        e(f"    s_lshr_b32 s{sT}, s{sHead}, 1")
        e(f"    s_sub_u32 s{sSlot}, s{sId}, s{sT}")
        e(f"    s_and_b32 s{sSlot}, s{sSlot}, 3")
    else:
        e(f"    s_and_b32 s{sSlot}, s{sId}, 3")
    e(f"    s_lshl_b32 s{sFlagOff}, s{sHead}, 2")
    e(f"    s_add_u32 s{sMb}, s{sFlagOff}, s{sSlot}")
    e(f"    s_mul_i32 s{sMb}, s{sMb}, {MBS}")
    e(f"    v_lshlrev_b32 v{vMb}, 4, v{vLane}")
    e(f"    v_mov_b32 v{vT0}, 0")
    e(f"    s_mov_b32 s{sCnt}, {SPIN}")
    if cwarm:
        e(f"    s_getpc_b64 s[{sG+4}:{sG+5}]")
        e("L_pc:")
        e(f"    s_sub_u32 s{sG+4}, s{sG+4}, L_pc-{NAME}")
        e(f"    s_subb_u32 s{sG+5}, s{sG+5}, 0")
        e(f"    s_mov_b32 s{sG+6}, L_codeend-{NAME}")
        e(f"    s_mov_b32 s{sG+7}, 0x00020000")
        e(f"    v_lshlrev_b32 v{vT1}, 7, v{vLane}")
        if cwarm == 1:
            e(f"    s_lshr_b32 s{sT}, s2, 3")
            e(f"    s_lshl_b32 s{sT}, s{sT}, 9")
            e("    s_mov_b64 exec, 15")
            e(f"    buffer_load_dword v{vL2}, v{vT1}, s[{sG+4}:{sG+7}], s{sT} offen")
            e("    s_mov_b64 exec, -1")
        else:
            e(f"    s_movk_i32 s{sT}, 0x2000")
            e(f"    buffer_load_dword v{vL2}, v{vT1}, s[{sG+4}:{sG+7}], 0 offen")
            e(f"    buffer_load_dword v{vL2}, v{vT1}, s[{sG+4}:{sG+7}], s{sT} offen")
    if vwarm or swarm:
        e(f"    s_lshl_b32 s3, s{sId}, 18")
        e("    s_waitcnt lgkmcnt(0)")
    if swarm:
        e(f"    s_add_u32 s{sV}, s{sV}, s3")
        e(f"    s_addc_u32 s{sV+1}, s{sV+1}, 0")
        for i in range(swarm):
            e(f"    s_load_dword s{sG+4+i}, s[{sV}:{sV+1}], {hex(i * (0x40000 // swarm))}")
    if vwarm:
        srd(sV, 1 << 26)
        e(f"    v_lshlrev_b32 v{vT1}, {18 - int(math.log2(vwarm))}, v{vLane}")
        e(f"    s_mov_b64 exec, {(1 << vwarm) - 1}")
        e(f"    buffer_load_dword v{vL2}, v{vT1}, s[{sV}:{sV+3}], s3 offen {pol}")
        e("    s_mov_b64 exec, -1")
    e(f"    s_cmp_eq_u32 s{sSlot}, 0")
    e("    s_cbranch_scc1 L_consumer")

    def wave_weights():
        e(f"    ds_read_b128 v[{vW}:{vW+3}], v{vT0} offset:{LDS_ML}")
        e(f"    ds_read_b128 v[{vW+4}:{vW+7}], v{vT0} offset:{LDS_ML+16}")
        e("    s_waitcnt lgkmcnt(0)")
        e(f"    v_max_f32 v{vM}, v{vW}, v{vW+2}")
        e(f"    v_max3_f32 v{vM}, v{vM}, v{vW+4}, v{vW+6}")
        for w in range(4):
            e(f"    v_sub_f32 v{vW+2*w}, v{vW+2*w}, v{vM}")
        for w in range(4):
            e(f"    v_exp_f32 v{vW+2*w}, v{vW+2*w}")
        e(f"    v_mul_f32 v{vL}, v{vW}, v{vW+1}")
        for w in range(1, 4):
            e(f"    v_fmac_f32 v{vL}, v{vW+2*w}, v{vW+2*w+1}")
    def reduce():
        for w in range(4):
            e(f"    ds_read_b128 v[{vP+4*w}:{vP+4*w+3}], v{vMb} offset:{w*512}")
        for w in range(4):
            e(f"    s_waitcnt lgkmcnt({3-w})")
            for h in range(2):
                a = vAcc + 2 * h
                b = vP + 4 * w + 2 * h
                if w == 0:
                    e(f"    v_pk_mul_f32 v[{a}:{a+1}], v[{b}:{b+1}], v[{vW}:{vW+1}] op_sel_hi:[1,0]")
                else:
                    e(f"    v_pk_fma_f32 v[{a}:{a+1}], v[{b}:{b+1}], v[{vW+2*w}:{vW+2*w+1}], v[{a}:{a+1}] op_sel_hi:[1,0,1]")

    e("    s_waitcnt lgkmcnt(0)")
    if hstop in (1, 2): e("    s_branch L_fin")
    if kbar >= 0:
        e("    s_barrier")
    e("    s_barrier")
    e("L_flagspin:")
    e(f"    buffer_load_dword v{vFlag}, v{vT0}, s[{sD}:{sD+3}], s{sFlagOff} offen sc1")
    wave_weights()
    e(f"    s_sub_u32 s{sCnt}, s{sCnt}, 1")
    e("    s_cbranch_scc1 L_flagok")
    e("    s_waitcnt vmcnt(0)")
    e(f"    v_readfirstlane_b32 s{sT}, v{vFlag}")
    e(f"    s_cmp_eq_u32 s{sT}, 0")
    e("    s_cbranch_scc1 L_flagspin")
    e("L_flagok:")
    stamp(1)
    e(f"    v_min_u32 v{vM}, -2, v{vM}")
    e(f"    v_min_u32 v{vL}, -2, v{vL}")
    e(f"    s_and_b32 s{sT}, s{sT}, 0xff")
    e("    s_mov_b64 exec, 1")
    def fin_prod():
        if stamps:
            stamp(3)
            e("    s_branch L_fin")
        else:
            e("    s_endpgm")
    def mins():
        for r in range(4):
            e(f"    v_min_u32 v{vAcc+r}, -2, v{vAcc+r}")
    if fast:
        e(f"    s_cmp_eq_u32 s{sT}, s{sXcc}")
        e("    s_cbranch_scc0 L_far")
        e(f"    buffer_store_dwordx2 v[{vM}:{vL}], v{vT0}, s[{sW}:{sW+3}], s{sMb} offen offset:512 {spol}".rstrip())
        e("    s_mov_b32 exec_lo, -1")
        if hstop in (3, 4): e("    s_branch L_fin")
        if stamps:
            e("    s_waitcnt lgkmcnt(0)")
        if dry:
            e("    s_branch L_pbody")
            e("L_pbar:")
            e("    s_cmp_eq_u32 0, 1")
        e("    s_barrier")
        e("L_pbody:")
        reduce()
        mins()
        if dry:
            e("    s_cbranch_scc1 L_pbar")
        e(f"    buffer_store_dwordx4 v[{vAcc}:{vAcc+3}], v{vMb}, s[{sW}:{sW+3}], s{sMb} offen {spol}".rstrip())
        fin_prod()
    e("L_far:")
    e(f"    s_add_u32 s{sMb}, s{sMb}, {hex(BOFF)}")
    e(f"    buffer_store_dwordx2 v[{vM}:{vL}], v{vT0}, s[{sW}:{sW+3}], s{sMb} offen offset:512 sc1")
    e("    s_mov_b32 exec_lo, -1")
    e(f"    s_lshl_b32 s{sT}, 0x100, s{sSlot}")
    e(f"    v_mov_b32 v{vFlag}, s{sT}")
    if stamps:
        e("    s_waitcnt lgkmcnt(0)")
    e("    s_barrier")
    reduce()
    mins()
    e(f"    buffer_store_dwordx4 v[{vAcc}:{vAcc+3}], v{vMb}, s[{sW}:{sW+3}], s{sMb} offen sc1")
    e("    s_mov_b64 exec, 1")
    e("    s_waitcnt vmcnt(0)")
    e(f"    buffer_atomic_or v{vFlag}, v{vT0}, s[{sD}:{sD+3}], s{sFlagOff} offen sc1")
    fin_prod()
    e("L_consumer:")
    for r in range(4):
        e(f"    v_mov_b32 v{vAcc+r}, -1")
    e(f"    v_mov_b32 v{vFlag}, s{sXcc}")
    e("    s_mov_b32 exec_hi, 0xff")
    e("    s_waitcnt lgkmcnt(0)")
    if kbar >= 0:
        e("    s_barrier")
    if preload is not None:
        e(f"    v_lshlrev_b32 v{vT1}, 7, v{vLane}")
        e("    s_mov_b64 exec, 0x1f1f1f")
        e(f"    buffer_load_dword v{vX}, v{vT1}, s[{sW}:{sW+3}], s{sMb} offen offset:{MBS} {preload}".rstrip())
        e("    s_mov_b32 exec_lo, -1")
        e("    s_mov_b32 exec_hi, 0xff")
        e("    s_waitcnt vmcnt(0)")
    for p in range(1, 4):
        e(f"    buffer_store_dwordx4 v[{vAcc}:{vAcc+3}], v{vMb}, s[{sW}:{sW+3}], s{sMb} offen offset:{p*MBS}")
    e(f"    v_and_b32 v{vX}, 15, v{vLane}")
    e(f"    v_lshrrev_b32 v{vT1}, 4, v{vLane}")
    e(f"    v_lshlrev_b32 v{vX}, 4, v{vX}")
    e(f"    v_lshl_add_u32 v{vOut}, v{vT1}, 3, v{vX}")
    e("    s_mov_b64 exec, 1")
    e("    s_waitcnt vmcnt(0)")
    if hstop == 1: e("    s_branch L_fin")
    e(f"    buffer_atomic_swap v{vFlag}, v{vT0}, s[{sD}:{sD+3}], s{sFlagOff} offen sc1")
    e("    s_mov_b32 exec_lo, -1")
    if hstop == 2: e("    s_branch L_fin")
    e(f"    s_add_u32 s{sG}, s{sMb}, {hex(BOFF)}")
    e(f"    s_mov_b32 s{sT}, 0")
    e("    s_barrier")
    wave_weights()
    e("L_mlspin:")
    for p in range(1, 4):
        e(f"    s_bitcmp1_b32 s{sT}, {8+p}")
        e(f"    s_cselect_b32 s{sG+p}, s{sG}, s{sMb}")
    for p in range(1, 4):
        e(f"    buffer_load_dwordx2 v[{vX+2*p}:{vX+2*p+1}], v{vT0}, s[{sW}:{sW+3}], s{sG+p} offen offset:{p*MBS+512} {ppol}")
    e(f"    buffer_load_dword v{vFlag}, v{vT0}, s[{sD}:{sD+3}], s{sFlagOff} offen sc1")
    e(f"    s_sub_u32 s{sCnt}, s{sCnt}, 1")
    e("    s_waitcnt vmcnt(0)")
    e("    s_cbranch_scc1 L_mlok")
    e(f"    v_readfirstlane_b32 s{sT}, v{vFlag}")
    e(f"    v_max3_u32 v{vT1}, v{vX+2}, v{vX+3}, v{vX+4}")
    e(f"    v_max3_u32 v{vT1}, v{vT1}, v{vX+5}, v{vX+6}")
    e(f"    v_max_u32 v{vT1}, v{vT1}, v{vX+7}")
    e(f"    v_cmp_eq_u32 vcc, -1, v{vT1}")
    e("    s_cbranch_vccnz L_mlspin")
    e("L_mlok:")
    e(f"    v_max_f32 v{vT1}, v{vM}, v{vX+2}")
    e(f"    v_max3_f32 v{vT1}, v{vT1}, v{vX+4}, v{vX+6}")
    e(f"    v_sub_f32 v{vX}, v{vM}, v{vT1}")
    for p in range(1, 4):
        e(f"    v_sub_f32 v{vX+2*p}, v{vX+2*p}, v{vT1}")
    for p in range(4):
        e(f"    v_exp_f32 v{vX+2*p}, v{vX+2*p}")
    e(f"    v_mul_f32 v{vL}, v{vX}, v{vL}")
    for p in range(1, 4):
        e(f"    v_fmac_f32 v{vL}, v{vX+2*p}, v{vX+2*p+1}")
    e(f"    v_rcp_f32 v{vL}, v{vL}")
    e(f"    s_mov_b32 s{sCnt}, {SPIN}")
    for p in range(4):
        e(f"    v_mul_f32 v{vX+2*p}, v{vX+2*p}, v{vL}")
    for w in range(4):
        e(f"    v_mul_f32 v{vW+2*w}, v{vW+2*w}, v{vX}")
    def polls(st):
        for p in range(1, 4):
            b = vB + 12 * st + 4 * (p - 1)
            e(f"    buffer_load_dwordx4 v[{b}:{b+3}], v{vMb}, s[{sW}:{sW+3}], s{sG+p} offen offset:{p*MBS} {ppol}")
    vR = vA
    def check(st, after):
        for p in range(1, 4):
            b = vB + 12 * st + 4 * (p - 1)
            e(f"    s_waitcnt vmcnt({after + 3 - p})")
            for h in range(2):
                src = vAcc + 2 * h if p == 1 else vR + 2 * h
                e(f"    v_pk_fma_f32 v[{vR+2*h}:{vR+2*h+1}], v[{b+2*h}:{b+2*h+1}], v[{vX+2*p}:{vX+2*p+1}], v[{src}:{src+1}] op_sel_hi:[1,0,1]")
            if p == 1:
                e(f"    v_max_u32 v{vT1}, v{b}, v{b+1}")
            else:
                e(f"    v_max3_u32 v{vT1}, v{vT1}, v{b}, v{b+1}")
            e(f"    v_max3_u32 v{vT1}, v{vT1}, v{b+2}, v{b+3}")
        e(f"    v_cmp_eq_u32 vcc, -1, v{vT1}")
        e(f"    v_cvt_pk_bf16_f32 v{vR}, v{vR}, v{vR+1}")
        e(f"    v_cvt_pk_bf16_f32 v{vR+1}, v{vR+2}, v{vR+3}")
    if prepoll:
        if hstop == 3: e("    s_branch L_fin")
        e(f"    s_mov_b32 s{sPass}, 1")
        e("    s_branch L_cbody")
        e("L_cbar:")
        e(f"    s_mov_b32 s{sPass}, 0")
        e("    s_waitcnt vmcnt(0)")
        if hstop in (4, 5): e("    s_branch L_fin")
    stamp(1)
    if stamps:
        e("    s_waitcnt lgkmcnt(0)")
    e("    s_barrier")
    e("L_cbody:")
    polls(0)
    reduce()
    for st in range(1, nsets):
        polls(st)
    if prepoll:
        e(f"    s_cmp_eq_u32 s{sPass}, 1")
    e("L_poll:")
    for st in range(nsets):
        check(st, 3 * (nsets - 1))
        if prepoll and st == 0:
            e("    s_cbranch_scc1 L_cbar")
        e("    s_cbranch_vccz L_got")
        polls(st)
    e(f"    s_sub_u32 s{sCnt}, s{sCnt}, 1")
    e("    s_cbranch_scc0 L_poll")
    e("L_got:")
    stamp(2)
    e(f"    buffer_store_dwordx2 v[{vR}:{vR+1}], v{vOut}, s[{sO}:{sO+3}], s{sOutOff} offen {opol}".rstrip())
    if stamps:
        stamp(3)
        e("    s_waitcnt vmcnt(0)")
        stamp(5)
        nsg = 100
        e("L_fin:")
        e("    s_mov_b64 exec, -1")
        e("    s_getreg_b32 s96, hwreg(HW_REG_XCC_ID)")
        e("    s_getreg_b32 s97, hwreg(HW_REG_HW_ID)")
        e("    s_waitcnt lgkmcnt(0)")
        for j in range(6):
            e(f"    v_mov_b32 v{vS+j}, s{84+2*j}")
        e(f"    v_mov_b32 v{vS+6}, s96")
        e(f"    v_mov_b32 v{vS+7}, s97")
        e(f"    s_mul_i32 s96, s2, {NW+1}")
        e(f"    s_add_u32 s96, s96, s{sWave}")
        e("    s_lshl_b32 s96, s96, 6")
        e("    s_add_u32 s96, s96, 0x100000")
        e(f"    v_mov_b32 v{vT0}, 0")
        e("    s_mov_b64 exec, 1")
        e(f"    buffer_store_dwordx4 v[{vS}:{vS+3}], v{vT0}, s[{sW}:{sW+3}], s96 offen")
        e(f"    buffer_store_dwordx4 v[{vS+4}:{vS+7}], v{vT0}, s[{sW}:{sW+3}], s96 offen offset:16")
    e("L_end:")
    e("    s_endpgm")
    e("L_codeend:")
    assert vB + 12 * nsets <= nv
    nvg = (nv + 3) // 4 * 4
    e('.section .rodata,"a"')
    e(".p2align 6")
    e(f".amdhsa_kernel {NAME}")
    e(f"  .amdhsa_next_free_vgpr {nvg}")
    e(f"  .amdhsa_next_free_sgpr {nsg}")
    e(f"  .amdhsa_accum_offset {nvg}")
    e("  .amdhsa_group_segment_fixed_size 0")
    e("  .amdhsa_kernarg_size 48")
    e("  .amdhsa_user_sgpr_count 2")
    e("  .amdhsa_user_sgpr_kernarg_segment_ptr 1")
    e("  .amdhsa_system_sgpr_workgroup_id_x 1")
    e(".end_amdhsa_kernel")
    return "\n".join(o) + "\n"

if __name__ == "__main__":
    out = sys.argv[1]
    kw = {}
    for a in sys.argv[2:]:
        k, v = a.split("=")
        try:
            v = int(v, 0)
        except ValueError:
            pass
        kw[k] = v
    open(out, "w").write(gen(**kw))
```

```python
import sys, math, struct, subprocess, tempfile, os, re

HDR = """; Kernarg layout for this problem (48 bytes, ptrs only, base s[0:1]):
"""
NAME = "standalone__mha_softmax__decode_kernel"
LLVM = "bin"
REGION = 768

def is_insn(l):
    s = l.split(";")[0].strip()
    return bool(s) and not s.endswith(":") and not s.startswith(".")

def sizes(text):
    with tempfile.TemporaryDirectory() as d:
        open(d + "/a.s", "w").write(text)
        subprocess.run([LLVM + "/clang", "-x", "assembler", "-target", "amdgcn-amd-amdhsa", "-mcpu=gfx950", "-c", d + "/a.s", "-o", d + "/a.o"], check=True)
        out = subprocess.run([LLVM + "/llvm-objdump", "-d", "--mcpu=gfx950", d + "/a.o"], capture_output=True, text=True, check=True).stdout
    r = []
    for l in out.splitlines():
        m = re.search(r"// [0-9A-F]{12}: ((?:[0-9A-F]{8} ?)+)", l)
        if m:
            r.append(4 * len(m.group(1).split()))
    return r

def gen(pol="nt", stamps=0, gmap=1, fast=1, opol="", nsets=2, ppol="sc1 nt", spol="", dry=0, prepoll=1, yrot=1,
        touch=1, qpol="nt", fpol="sc1", preload=None, nohelp=0, bart=1, baru=0, probe=-1):
    if probe >= 0: stamps = 1
    NW, U = 4, 4
    NWG = 256
    RND = 16384
    MBS = 1024
    BOFF = 0x40000
    SPIN = 0x40000
    o = []
    e = o.append
    sK, sV, sQ, sO, sD, sW = 4, 8, 12, 16, 20, 24
    sHead, sSlot, sWave, sC = 28, 29, 30, 31
    sOutOff, sXcc, sOff, sFlagOff, sCnt, sT, sMb, sPass = 32, 33, 34, 35, 36, 37, 38, 39
    sG = 40
    sMask = 44
    sId, sIt = 46, 47
    nsg = 48
    vOff, vLane, vM, vL, vT0, vT1 = 1, 2, 4, 5, 6, 7
    vQ, vMask, vAcc, vP = 8, 12, 16, 20
    vMb, vFlag, vOut = 24, 25, 26
    vA = 28
    vRing = 44
    nv = 76 + (12 * nsets - 24 if nsets > 2 else 0)
    LDS_ML = NW * 512
    lds_bytes = LDS_ML + 64

    def stamp(j):
        if stamps:
            e(f"    s_memrealtime s[{84+2*j}:{85+2*j}]")
    def srd(r, sz):
        e(f"    s_mov_b32 s{r+2}, {hex(sz)}")
        e(f"    s_mov_b32 s{r+3}, 0x00020000")
    def slot(u, i):
        return vRing + 16 * (u % 2) + 4 * i
    def issue(u):
        for i in range(4):
            s = slot(u, i)
            e(f"    buffer_load_dwordx4 v[{s}:{s+3}], v{vOff}, s[{sK}:{sK+3}], s{sOff} offen offset:{i*1024} {pol}".rstrip())
        e(f"    s_add_u32 s{sOff}, s{sOff}, {hex(RND)}")
        e(f"    s_and_b32 s{sOff}, s{sOff}, 0x3ffff")
    def dpp(op, d, a, b, ctl, bank=0xf):
        e(f"    {op}_dpp v{d}, v{a}, v{b} {ctl} row_mask:0xf bank_mask:{hex(bank)}")

    e(f"{NAME}:")
    stamp(0)
    e(f"    s_load_dwordx2 s[{sQ}:{sQ+1}], s[0:1], 0")
    e(f"    s_load_dwordx2 s[{sK}:{sK+1}], s[0:1], 8")
    e(f"    s_load_dwordx2 s[{sV}:{sV+1}], s[0:1], 16")
    e(f"    v_lshrrev_b32 v{vT0}, 6, v0")
    e(f"    v_and_b32 v{vLane}, 63, v0")
    e(f"    v_readfirstlane_b32 s{sWave}, v{vT0}")
    e(f"    s_cmp_ge_u32 s2, {NWG}")
    e("    s_cbranch_scc1 L_end")
    if stamps:
        e(f"    s_load_dwordx2 s[{sW}:{sW+1}], s[0:1], 40")
        srd(sW, 1 << 28)
        for j in range(1, 6):
            e(f"    s_mov_b32 s{84+2*j}, 0")
    if gmap == 0:
        e(f"    s_mov_b32 s{sId}, s2")
    else:
        e(f"    s_and_b32 s{sId}, s2, 7")
        e(f"    s_lshl_b32 s{sId}, s{sId}, 5")
        e(f"    s_lshr_b32 s{sT}, s2, 3")
        e(f"    s_or_b32 s{sId}, s{sId}, s{sT}")
    e(f"    s_lshr_b32 s{sHead}, s{sId}, 2")
    e(f"    s_lshl_b32 s{sOutOff}, s{sHead}, 8")
    e(f"    s_cmp_eq_u32 s{sWave}, {NW}")
    e("    s_cbranch_scc1 L_touch0")
    e(f"    s_lshl_b32 s3, s{sId}, 18")
    srd(sK, 1 << 26)
    srd(sQ, 16384)
    if yrot:
        e(f"    s_and_b32 s{sOff}, s{sHead}, 1")
        e(f"    s_lshl_b32 s{sOff}, s{sOff}, 17")
    else:
        e(f"    s_mov_b32 s{sOff}, 0")
    e(f"    v_lshl_add_u32 v{vOff}, v{vLane}, 4, s3")
    e(f"    v_lshl_add_u32 v{vOff}, v{vT0}, 12, v{vOff}")
    e(f"    v_and_b32 v{vT1}, 15, v0")
    e(f"    v_lshlrev_b32 v{vT1}, 4, v{vT1}")
    e("    s_waitcnt lgkmcnt(0)")
    stamp(1)
    e(f"    buffer_load_dwordx4 v[{vQ}:{vQ+3}], v{vT1}, s[{sQ}:{sQ+3}], s{sOutOff} offen {qpol}".rstrip())
    issue(0); issue(1)
    e(f"    s_mov_b32 s{sMask}, 0x11111111")
    e(f"    s_mov_b32 s{sMask+1}, s{sMask}")
    e(f"    s_mov_b32 s{sIt}, 0")
    e("L_kloop:")
    for u in range(4):
        a = vA + 4 * u
        for i in range(4):
            e(f"    s_waitcnt vmcnt({7-i})")
            s = slot(u, i)
            for r in range(4):
                e(f"    v_dot2_f32_bf16 v{a+i}, v{s+r}, v{vQ+r}, {'0' if r == 0 else 'v%d' % (a+i)}")
        if u == 2:
            e(f"    s_cmp_eq_u32 s{sIt}, 3")
            e(f"    s_cselect_b64 s[{sK}:{sK+1}], s[{sV}:{sV+1}], s[{sK}:{sK+1}]")
        issue(u)
        dpp("v_add_f32", a, a, a, "row_ror:8", 0x3)
        dpp("v_add_f32", a + 2, a + 2, a + 2, "row_ror:8", 0x3)
        e("    s_nop 0")
        dpp("v_add_f32", a, a + 1, a + 1, "row_ror:8", 0xc)
        dpp("v_add_f32", a + 2, a + 3, a + 3, "row_ror:8", 0xc)
        e("    s_nop 0")
        dpp("v_add_f32", a, a, a, "row_half_mirror", 0x5)
        e("    s_nop 1")
        dpp("v_add_f32", a, a + 2, a + 2, "row_half_mirror", 0xa)
    e(f"    s_add_u32 s{sIt}, s{sIt}, 1")
    for ctl in ("quad_perm:[1,0,3,2]", "quad_perm:[2,3,0,1]"):
        for u in range(4):
            dpp("v_add_f32", vA + 4 * u, vA + 4 * u, vA + 4 * u, ctl)
    for u in range(4):
        e(f"    v_cndmask_b32 v{vP+u}, v{vP+u}, v{vA+4*u}, s[{sMask}:{sMask+1}]")
    e(f"    s_lshl_b64 s[{sMask}:{sMask+1}], s[{sMask}:{sMask+1}], 1")
    e(f"    s_cmp_lt_u32 s{sIt}, 4")
    e("    s_cbranch_scc1 L_kloop")
    stamp(3)
    def allreduce(v, op, fill):
        fill = list(fill)
        def pad(n):
            k = 0
            while k < n and fill:
                e(fill.pop(0)); k += 1
            if k < n:
                e(f"    s_nop {n-k-1}")
        for sh in (8, 4, 2, 1):
            pad(2)
            dpp(op, v, v, v, f"row_ror:{sh}")
        for sw in ("v_permlane32_swap_b32", "v_permlane16_swap_b32"):
            e(f"    v_mov_b32 v{vT0}, v{v}")
            pad(2)
            e(f"    {sw} v{v}, v{vT0}")
            pad(1)
            e(f"    {op} v{v}, v{v}, v{vT0}")
        for x in fill:
            e(x)
    c = math.log2(math.e) / math.sqrt(128.0)
    cbits = struct.unpack("<I", struct.pack("<f", c))[0]
    e(f"    v_max_f32 v{vM}, v{vP}, v{vP+1}")
    e(f"    v_max3_f32 v{vM}, v{vM}, v{vP+2}, v{vP+3}")
    f1 = [f"    s_mov_b32 s{sC}, {hex(cbits)}",
          f"    v_and_b32 v{vA}, 1, v0",
          f"    v_lshlrev_b32 v{vA}, 4, v{vA}",
          f"    v_mov_b32 v{vA+1}, 0xffff",
          f"    v_lshlrev_b32 v{vA}, v{vA}, v{vA+1}",
          f"    v_bfe_u32 v{vA+1}, v0, 1, 3",
          f"    v_cmp_eq_u32 s[{sG}:{sG+1}], 0, v{vA+1}",
          f"    v_cmp_eq_u32 s[{sG+2}:{sG+3}], 1, v{vA+1}",
          f"    v_cmp_eq_u32 s[{sMask}:{sMask+1}], 2, v{vA+1}",
          f"    v_cmp_eq_u32 vcc, 3, v{vA+1}",
          f"    v_cndmask_b32 v{vMask}, 0, v{vA}, s[{sG}:{sG+1}]",
          f"    v_cndmask_b32 v{vMask+1}, 0, v{vA}, s[{sG+2}:{sG+3}]",
          f"    v_cndmask_b32 v{vMask+2}, 0, v{vA}, s[{sMask}:{sMask+1}]",
          f"    v_cndmask_b32 v{vMask+3}, 0, v{vA}, vcc"]
    allreduce(vM, "v_max_f32", f1)
    e(f"    v_mul_f32 v{vM}, s{sC}, v{vM}")
    for u in range(4):
        e(f"    v_fma_f32 v{vP+u}, v{vP+u}, s{sC}, -v{vM}")
    for u in range(4):
        e(f"    v_exp_f32 v{vP+u}, v{vP+u}")
    e(f"    v_add_f32 v{vL}, v{vP}, v{vP+1}")
    e(f"    v_add_f32 v{vL}, v{vL}, v{vP+2}")
    e(f"    v_add_f32 v{vL}, v{vL}, v{vP+3}")
    f2 = [f"    v_cvt_pk_bf16_f32 v{vP+u}, v{vP+u}, v{vP+u}" for u in range(4)]
    f2 += [f"    v_mov_b32 v{vAcc+r}, 0" for r in range(4)]
    f2 += [f"    s_lshl_b32 s{sT}, s{sWave}, 9",
           f"    v_lshl_add_u32 v{vOut}, v{vLane}, 4, s{sT}",
           f"    s_lshl_b32 s{sT}, s{sWave}, 3",
           f"    v_mov_b32 v{vT1}, s{sT}",
           f"    s_mov_b32 s{sIt}, 0"]
    allreduce(vL, "v_add_f32", f2)
    e(f"    ds_write_b64 v{vT1}, v[{vM}:{vL}] offset:{LDS_ML}")
    bank = [0, 2, 1, 3]
    e("L_vloop:")
    for u in range(4):
        for i in range(4):
            for r in range(4):
                dpp("v_and_b32", vA + 4 * i + r, vP + u, vMask + r, f"row_newbcast:{4*bank[i]}")
        if u == 2:
            e(f"    s_cmp_eq_u32 s{sIt}, 3")
            e(f"    s_cselect_b32 s{sK+2}, 0, s{sK+2}")
        if u == 3:
            e("; crit begin")
            e(f"    s_cmp_eq_u32 s{sIt}, 3")
        for i in range(4):
            s = slot(u, i)
            e(f"    s_waitcnt vmcnt({7-i})")
            e(f"    v_mfma_f32_16x16x32_bf16 v[{vAcc}:{vAcc+3}], v[{vA+4*i}:{vA+4*i+3}], v[{s}:{s+3}], v[{vAcc}:{vAcc+3}]")
        if u == 3:
            e("    s_cbranch_scc1 L_vdone")
        issue(u)
        e(f"    v_mov_b32_dpp v{vP+u}, v{vP+u} quad_perm:[1,2,3,0] row_mask:0xf bank_mask:0xf")
        if u == baru:
            e(f"    s_cmp_eq_u32 s{sIt}, {bart}")
            e("    s_cbranch_scc0 L_nobar")
            e("    s_waitcnt lgkmcnt(0)")
            e("    s_barrier")
            e("L_nobar:")
    e(f"    s_add_u32 s{sIt}, s{sIt}, 1")
    e("    s_branch L_vloop")
    e("L_vdone:")
    e("    s_mov_b32 exec_hi, 0")
    if stamps:
        stamp(4)
        e("    s_nop 4")
    else:
        e("    s_nop 5")
    e(f"    ds_write_b128 v{vOut}, v[{vAcc}:{vAcc+3}]")
    e("    s_waitcnt lgkmcnt(0)")
    e("    s_barrier")
    e("    s_branch L_fin" if stamps else "    s_endpgm")
    e("; crit end")
    vPw = vA
    vW = vQ
    vX = vRing
    vB = vRing + 8
    vR = vP
    e("L_helper:")
    e(f"    s_load_dwordx2 s[{sW}:{sW+1}], s[0:1], 40")
    e(f"    s_load_dwordx2 s[{sD}:{sD+1}], s[0:1], 32")
    e(f"    s_load_dwordx2 s[{sO}:{sO+1}], s[0:1], 24")
    srd(sO, 16384); srd(sD, 256); srd(sW, 1 << 28)
    if nohelp:
        e("    s_branch L_fin")
    e(f"    s_getreg_b32 s{sXcc}, hwreg(HW_REG_XCC_ID, 0, 4)")
    e(f"    s_or_b32 s{sXcc}, s{sXcc}, 0x80")
    if gmap == 0:
        e(f"    s_lshr_b32 s{sT}, s{sHead}, 1")
        e(f"    s_sub_u32 s{sSlot}, s{sId}, s{sT}")
        e(f"    s_and_b32 s{sSlot}, s{sSlot}, 3")
    else:
        e(f"    s_and_b32 s{sSlot}, s{sId}, 3")
    e(f"    s_lshl_b32 s{sFlagOff}, s{sHead}, 2")
    e(f"    s_add_u32 s{sMb}, s{sFlagOff}, s{sSlot}")
    e(f"    s_mul_i32 s{sMb}, s{sMb}, {MBS}")
    e(f"    v_lshlrev_b32 v{vMb}, 4, v{vLane}")
    e(f"    v_mov_b32 v{vT0}, 0")
    e(f"    s_mov_b32 s{sCnt}, {hex(SPIN)}")
    e(f"    s_cmp_eq_u32 s{sSlot}, 0")
    e("    s_cbranch_scc1 L_consumer")

    def wave_weights():
        e(f"    ds_read_b128 v[{vW}:{vW+3}], v{vT0} offset:{LDS_ML}")
        e(f"    ds_read_b128 v[{vW+4}:{vW+7}], v{vT0} offset:{LDS_ML+16}")
        e("    s_waitcnt lgkmcnt(0)")
        e(f"    v_max_f32 v{vM}, v{vW}, v{vW+2}")
        e(f"    v_max3_f32 v{vM}, v{vM}, v{vW+4}, v{vW+6}")
        for w in range(4):
            e(f"    v_sub_f32 v{vW+2*w}, v{vW+2*w}, v{vM}")
        for w in range(4):
            e(f"    v_exp_f32 v{vW+2*w}, v{vW+2*w}")
        e(f"    v_mul_f32 v{vL}, v{vW}, v{vW+1}")
        for w in range(1, 4):
            e(f"    v_fmac_f32 v{vL}, v{vW+2*w}, v{vW+2*w+1}")
    def reduce():
        for w in range(4):
            e(f"    ds_read_b128 v[{vPw+4*w}:{vPw+4*w+3}], v{vMb} offset:{w*512}")
        for w in range(4):
            e(f"    s_waitcnt lgkmcnt({3-w})")
            for h in range(2):
                a = vAcc + 2 * h
                b = vPw + 4 * w + 2 * h
                if w == 0:
                    e(f"    v_pk_mul_f32 v[{a}:{a+1}], v[{b}:{b+1}], v[{vW}:{vW+1}] op_sel_hi:[1,0]")
                else:
                    e(f"    v_pk_fma_f32 v[{a}:{a+1}], v[{b}:{b+1}], v[{vW+2*w}:{vW+2*w+1}], v[{a}:{a+1}] op_sel_hi:[1,0,1]")
    def fin_prod():
        if stamps:
            stamp(3)
            e("    s_branch L_fin")
        else:
            e("    s_endpgm")
    def mins():
        for r in range(4):
            e(f"    v_min_u32 v{vAcc+r}, -2, v{vAcc+r}")
    e("    s_waitcnt lgkmcnt(0)")
    e("    s_barrier")
    wave_weights()
    e("L_flagspin:")
    e(f"    buffer_load_dword v{vFlag}, v{vT0}, s[{sD}:{sD+3}], s{sFlagOff} offen {fpol}")
    e(f"    s_sub_u32 s{sCnt}, s{sCnt}, 1")
    e("    s_waitcnt vmcnt(0)")
    e(f"    v_readfirstlane_b32 s{sT}, v{vFlag}")
    e("    s_cbranch_scc1 L_flagok")
    e(f"    s_cmp_eq_u32 s{sT}, 0")
    e("    s_cbranch_scc1 L_flagspin")
    e("L_flagok:")
    stamp(1)
    e(f"    v_min_u32 v{vM}, -2, v{vM}")
    e(f"    v_min_u32 v{vL}, -2, v{vL}")
    e(f"    s_and_b32 s{sT}, s{sT}, 0xff")
    e("    s_mov_b64 exec, 1")
    if fast:
        e(f"    s_cmp_eq_u32 s{sT}, s{sXcc}")
        e("    s_cbranch_scc0 L_far")
        e(f"    buffer_store_dwordx2 v[{vM}:{vL}], v{vT0}, s[{sW}:{sW+3}], s{sMb} offen offset:512 {spol}".rstrip())
        e("    s_mov_b32 exec_lo, -1")
        if stamps:
            e("    s_waitcnt lgkmcnt(0)")
        e("; crit begin")
        if dry:
            e("    s_branch L_pbody")
            e("L_pbar:")
            e("    s_cmp_eq_u32 0, 1")
        e("    s_barrier")
        e("L_pbody:")
        reduce()
        mins()
        if dry:
            e("    s_cbranch_scc1 L_pbar")
        e(f"    buffer_store_dwordx4 v[{vAcc}:{vAcc+3}], v{vMb}, s[{sW}:{sW+3}], s{sMb} offen {spol}".rstrip())
        fin_prod()
        e("; crit end")
    else:
        e("    s_branch L_far")
    e("L_consumer:")
    for r in range(4):
        e(f"    v_mov_b32 v{vAcc+r}, -1")
    e(f"    v_mov_b32 v{vFlag}, s{sXcc}")
    e("    s_mov_b32 exec_hi, 0xff")
    e("    s_waitcnt lgkmcnt(0)")
    if preload is not None:
        e(f"    v_lshlrev_b32 v{vT1}, 7, v{vLane}")
        e("    s_mov_b64 exec, 0x1f1f1f")
        e(f"    buffer_load_dword v{vX}, v{vT1}, s[{sW}:{sW+3}], s{sMb} offen offset:{MBS} {preload}".rstrip())
        e("    s_mov_b32 exec_lo, -1")
        e("    s_mov_b32 exec_hi, 0xff")
        e("    s_waitcnt vmcnt(0)")
    for p in range(1, 4):
        e(f"    buffer_store_dwordx4 v[{vAcc}:{vAcc+3}], v{vMb}, s[{sW}:{sW+3}], s{sMb} offen offset:{p*MBS}")
    e(f"    v_and_b32 v{vX}, 15, v{vLane}")
    e(f"    v_lshrrev_b32 v{vT1}, 4, v{vLane}")
    e(f"    v_lshlrev_b32 v{vX}, 4, v{vX}")
    e(f"    v_lshl_add_u32 v{vOut}, v{vT1}, 3, v{vX}")
    e("    s_mov_b64 exec, 1")
    e("    s_waitcnt vmcnt(0)")
    e(f"    buffer_atomic_swap v{vFlag}, v{vT0}, s[{sD}:{sD+3}], s{sFlagOff} offen sc1")
    e("    s_mov_b32 exec_lo, -1")
    e(f"    s_add_u32 s{sG}, s{sMb}, {hex(BOFF)}")
    e(f"    s_mov_b32 s{sT}, 0")
    e("    s_barrier")
    wave_weights()
    e("L_mlspin:")
    for p in range(1, 4):
        e(f"    s_bitcmp1_b32 s{sT}, {8+p}")
        e(f"    s_cselect_b32 s{sG+p}, s{sG}, s{sMb}")
    for p in range(1, 4):
        e(f"    buffer_load_dwordx2 v[{vX+2*p}:{vX+2*p+1}], v{vT0}, s[{sW}:{sW+3}], s{sG+p} offen offset:{p*MBS+512} {ppol}")
    e(f"    buffer_load_dword v{vFlag}, v{vT0}, s[{sD}:{sD+3}], s{sFlagOff} offen {fpol}")
    e(f"    s_sub_u32 s{sCnt}, s{sCnt}, 1")
    e("    s_waitcnt vmcnt(0)")
    e("    s_cbranch_scc1 L_mlok")
    e(f"    v_readfirstlane_b32 s{sT}, v{vFlag}")
    e(f"    v_max3_u32 v{vT1}, v{vX+2}, v{vX+3}, v{vX+4}")
    e(f"    v_max3_u32 v{vT1}, v{vT1}, v{vX+5}, v{vX+6}")
    e(f"    v_max_u32 v{vT1}, v{vT1}, v{vX+7}")
    e(f"    v_cmp_eq_u32 vcc, -1, v{vT1}")
    e("    s_cbranch_vccnz L_mlspin")
    e("L_mlok:")
    e(f"    v_max_f32 v{vT1}, v{vM}, v{vX+2}")
    e(f"    v_max3_f32 v{vT1}, v{vT1}, v{vX+4}, v{vX+6}")
    e(f"    v_sub_f32 v{vX}, v{vM}, v{vT1}")
    for p in range(1, 4):
        e(f"    v_sub_f32 v{vX+2*p}, v{vX+2*p}, v{vT1}")
    for p in range(4):
        e(f"    v_exp_f32 v{vX+2*p}, v{vX+2*p}")
    e(f"    v_mul_f32 v{vL}, v{vX}, v{vL}")
    for p in range(1, 4):
        e(f"    v_fmac_f32 v{vL}, v{vX+2*p}, v{vX+2*p+1}")
    e(f"    v_rcp_f32 v{vL}, v{vL}")
    e(f"    s_mov_b32 s{sCnt}, {hex(SPIN)}")
    for p in range(4):
        e(f"    v_mul_f32 v{vX+2*p}, v{vX+2*p}, v{vL}")
    for w in range(4):
        e(f"    v_mul_f32 v{vW+2*w}, v{vW+2*w}, v{vX}")
    def polls(st):
        for p in range(1, 4):
            b = vB + 12 * st + 4 * (p - 1)
            e(f"    buffer_load_dwordx4 v[{b}:{b+3}], v{vMb}, s[{sW}:{sW+3}], s{sG+p} offen offset:{p*MBS} {ppol}")
    def check(st, after):
        for p in range(1, 4):
            b = vB + 12 * st + 4 * (p - 1)
            e(f"    s_waitcnt vmcnt({after + 3 - p})")
            for h in range(2):
                src = vAcc + 2 * h if p == 1 else vR + 2 * h
                e(f"    v_pk_fma_f32 v[{vR+2*h}:{vR+2*h+1}], v[{b+2*h}:{b+2*h+1}], v[{vX+2*p}:{vX+2*p+1}], v[{src}:{src+1}] op_sel_hi:[1,0,1]")
            if p == 1:
                e(f"    v_max_u32 v{vT1}, v{b}, v{b+1}")
            else:
                e(f"    v_max3_u32 v{vT1}, v{vT1}, v{b}, v{b+1}")
            e(f"    v_max3_u32 v{vT1}, v{vT1}, v{b+2}, v{b+3}")
        e(f"    v_cmp_eq_u32 vcc, -1, v{vT1}")
        e(f"    v_cvt_pk_bf16_f32 v{vR}, v{vR}, v{vR+1}")
        e(f"    v_cvt_pk_bf16_f32 v{vR+1}, v{vR+2}, v{vR+3}")
    if prepoll:
        polls(0)
        e("    s_waitcnt vmcnt(0)")
    stamp(1)
    if stamps:
        e("    s_waitcnt lgkmcnt(0)")
    e("; crit begin")
    e("    s_barrier")
    polls(0)
    reduce()
    for st in range(1, nsets):
        polls(st)
    e("L_poll:")
    for st in range(nsets):
        check(st, 3 * (nsets - 1))
        e("    s_cbranch_vccz L_got")
        polls(st)
    e(f"    s_sub_u32 s{sCnt}, s{sCnt}, 1")
    e("    s_cbranch_scc0 L_poll")
    e("L_got:")
    stamp(2)
    e(f"    buffer_store_dwordx2 v[{vR}:{vR+1}], v{vOut}, s[{sO}:{sO+3}], s{sOutOff} offen {opol}".rstrip())
    if stamps:
        stamp(3)
        e("    s_waitcnt vmcnt(0)")
        stamp(5)
        nsg = 100
        e("L_fin:")
        if probe >= 0:
            e("    s_branch L_probe")
        else:
            e("    s_mov_b64 exec, -1")
            e("    s_getreg_b32 s96, hwreg(HW_REG_XCC_ID)")
            e("    s_getreg_b32 s97, hwreg(HW_REG_HW_ID)")
            e("    s_waitcnt lgkmcnt(0)")
            for j in range(6):
                e(f"    v_mov_b32 v{vA+j}, s{84+2*j}")
            e(f"    v_mov_b32 v{vA+6}, s96")
            e(f"    v_mov_b32 v{vA+7}, s97")
            e(f"    s_mul_i32 s96, s2, {NW+1}")
            e(f"    s_add_u32 s96, s96, s{sWave}")
            e("    s_lshl_b32 s96, s96, 6")
            e("    s_add_u32 s96, s96, 0x100000")
            e(f"    v_mov_b32 v{vT0}, 0")
            e("    s_mov_b64 exec, 1")
            e(f"    buffer_store_dwordx4 v[{vA}:{vA+3}], v{vT0}, s[{sW}:{sW+3}], s96 offen")
            e(f"    buffer_store_dwordx4 v[{vA+4}:{vA+7}], v{vT0}, s[{sW}:{sW+3}], s96 offen offset:16")
    e("L_end:")
    e("    s_endpgm")
    e("; crit end")
    e("L_hotend:")
    e("L_far:")
    e(f"    s_add_u32 s{sMb}, s{sMb}, {hex(BOFF)}")
    e(f"    buffer_store_dwordx2 v[{vM}:{vL}], v{vT0}, s[{sW}:{sW+3}], s{sMb} offen offset:512 sc1")
    e("    s_mov_b32 exec_lo, -1")
    for r in range(4):
        e(f"    v_mov_b32 v{vAcc+r}, -1")
    e(f"    s_lshl_b32 s{sT}, 0x100, s{sSlot}")
    e(f"    v_mov_b32 v{vFlag}, s{sT}")
    e(f"    buffer_store_dwordx4 v[{vAcc}:{vAcc+3}], v{vMb}, s[{sW}:{sW+3}], s{sMb} offen sc1")
    e("    s_mov_b64 exec, 1")
    e("    s_waitcnt vmcnt(0)")
    e(f"    buffer_atomic_or v{vFlag}, v{vT0}, s[{sD}:{sD+3}], s{sFlagOff} offen sc1")
    e("    s_mov_b32 exec_lo, -1")
    if stamps:
        e("    s_waitcnt lgkmcnt(0)")
    e("    s_barrier")
    reduce()
    mins()
    e(f"    buffer_store_dwordx4 v[{vAcc}:{vAcc+3}], v{vMb}, s[{sW}:{sW+3}], s{sMb} offen sc1")
    fin_prod()
    if probe >= 0:
        def spin(lbl, base, lim):
            e(f"{lbl}:")
            e("    s_sleep 4")
            e("    s_memrealtime s[96:97]")
            e("    s_waitcnt lgkmcnt(0)")
            e(f"    s_sub_u32 s96, s96, {base}")
            e(f"    s_cmp_lt_u32 s96, {lim}")
            e(f"    s_cbranch_scc1 {lbl}")
        e("L_probe:")
        e("    s_mov_b64 exec, -1")
        e("    s_waitcnt lgkmcnt(0) vmcnt(0)")
        e(f"    v_lshlrev_b32 v{vT0}, 2, v{vLane}")
        e("    s_mov_b32 s98, 0x200000")
        e(f"    s_or_b32 s99, s2, s{sWave}")
        spin("L_sp0", "s84", 2500)
        e("    s_cmp_eq_u32 s99, 0")
        e("    s_cbranch_scc0 L_noz")
        e(f"    v_mov_b32 v{vA}, 0")
        e(f"    buffer_store_dword v{vA}, v{vT0}, s[{sW}:{sW+3}], s98 offen sc1")
        e("L_noz:")
        e(f"    v_mov_b32 v{vA+1}, 0")
        e("    s_not_b32 s96, s84")
        e(f"    v_writelane_b32 v{vA+1}, s96, 0")
        e(f"    v_writelane_b32 v{vA+1}, s84, 1")
        e(f"    v_writelane_b32 v{vA+1}, s92, 2")
        e(f"    v_writelane_b32 v{vA+1}, s94, 3")
        e("    s_not_b32 s96, s92")
        e(f"    s_cmp_eq_u32 s{sWave}, {NW}")
        e("    s_cselect_b32 s96, 0, s96")
        e(f"    v_writelane_b32 v{vA+1}, s96, 4")
        e("    s_cselect_b32 s96, 0, s90")
        e(f"    v_writelane_b32 v{vA+1}, s96, 5")
        spin("L_sp1", "s84", 3000)
        e("    s_mov_b64 exec, 63")
        e(f"    buffer_atomic_umax v{vA+1}, v{vT0}, s[{sW}:{sW+3}], s98 offen sc1")
        e("    s_cmp_eq_u32 s99, 0")
        e("    s_cbranch_scc0 L_end")
        spin("L_sp2", "s84", 5500)
        e(f"    v_mov_b32 v{vA}, 0")
        e(f"    buffer_atomic_umax v{vA}, v{vT0}, s[{sW}:{sW+3}], s98 offen sc0 sc1")
        e("    s_waitcnt vmcnt(0)")
        e(f"    v_readlane_b32 s50, v{vA}, 0")
        e(f"    v_readlane_b32 s51, v{vA}, {probe}")
        e("    s_nop 3")
        e("    s_not_b32 s50, s50")
        if probe in (0, 4):
            e("    s_not_b32 s51, s51")
        e("    s_sub_u32 s51, s51, s50")
        e("    s_min_u32 s51, s51, 4000")
        e("    s_mul_i32 s51, s51, 10")
        e("    s_add_u32 s51, s51, 6000")
        spin("L_sp3", "s50", "s51")
        e("    s_endpgm")
    assert vB + 12 * nsets <= nv
    nvg = (nv + 3) // 4 * 4
    head = HDR + f"; @launch grid=({NWG},1,1) block=({(NW+1)*64},1,1) lds={lds_bytes}\n"
    head += f'.amdgcn_target "amdgcn-amd-amdhsa--gfx950"\n.text\n.globl {NAME}\n.p2align 8\n.type {NAME},@function\n'
    tail = f""".section .rodata,"a"
.p2align 6
.amdhsa_kernel {NAME}
  .amdhsa_next_free_vgpr {nvg}
  .amdhsa_next_free_sgpr {nsg}
  .amdhsa_accum_offset {nvg}
  .amdhsa_group_segment_fixed_size 0
  .amdhsa_kernarg_size 48
  .amdhsa_user_sgpr_count 2
  .amdhsa_user_sgpr_kernarg_segment_ptr 1
  .amdhsa_system_sgpr_workgroup_id_x 1
.end_amdhsa_kernel
"""
    if not touch:
        body = [l.replace("L_touch0", "L_helper") for l in o]
        return head + "\n".join(body) + "\n" + tail
    sz = sizes(head + "\n".join(l.replace("L_touch0", "L_helper") for l in o) + "\n" + tail)
    body = []
    pos = 0; k = 0; n = 0; hot = True
    prev_uncond = False
    clen = {}
    cur = None; m = 0
    for idx, l in enumerate(o):
        if l.startswith("; crit begin"): cur = idx; clen[cur] = 0
        elif l.startswith("; crit end"): cur = None
        elif is_insn(l):
            if cur is not None: clen[cur] += sz[m]
        if is_insn(l): m += 1
    for idx, l in enumerate(o):
        if l.startswith("L_hotend"):
            hot = False
        nxt = (k + 1) * REGION
        force = idx in clen and pos + clen[idx] > nxt
        if force: assert clen[idx] + 4 <= REGION
        if hot and (force or ((is_insn(l) or prev_uncond) and pos + (0 if prev_uncond else 4) >= nxt)):
            if not prev_uncond:
                body.append(f"    s_branch L_over{k}"); pos += 4
            while pos < nxt:
                body.append("    s_endpgm"); pos += 4
            assert pos + 4 <= nxt + 64
            body.append(f"L_touch{k}:")
            body.append(f"    s_branch L_touch{k+1}"); pos += 4
            if not prev_uncond:
                body.append(f"L_over{k}:")
            k += 1
        if l.startswith("; crit"):
            continue
        body.append(l)
        if is_insn(l):
            pos += sz[n]; n += 1
            prev_uncond = l.strip().startswith(("s_branch", "s_endpgm"))
        else:
            prev_uncond = False
    assert n == len(sz)
    body = [l.replace(f"L_touch{k}", "L_helper") if l.strip().endswith(f"L_touch{k}") else l for l in body]
    return head + "\n".join(body) + "\n" + tail

if __name__ == "__main__":
    out = sys.argv[1]
    kw = {}
    for a in sys.argv[2:]:
        k, v = a.split("=")
        try:
            v = int(v, 0)
        except ValueError:
            pass
        kw[k] = v
    open(out, "w").write(gen(**kw))
```

```python
import sys, math, struct, subprocess, tempfile, os, re

HDR = """; Kernarg layout for this problem (48 bytes, ptrs only, base s[0:1]):
"""
NAME = "standalone__mha_softmax__decode_kernel"
LLVM = "bin"
REGION = 768

def is_insn(l):
    s = l.split(";")[0].strip()
    return bool(s) and not s.endswith(":") and not s.startswith(".")

def sizes(text):
    with tempfile.TemporaryDirectory() as d:
        open(d + "/a.s", "w").write(text)
        subprocess.run([LLVM + "/clang", "-x", "assembler", "-target", "amdgcn-amd-amdhsa", "-mcpu=gfx950", "-c", d + "/a.s", "-o", d + "/a.o"], check=True)
        out = subprocess.run([LLVM + "/llvm-objdump", "-d", "--mcpu=gfx950", d + "/a.o"], capture_output=True, text=True, check=True).stdout
    r = []
    for l in out.splitlines():
        m = re.search(r"// [0-9A-F]{12}: ((?:[0-9A-F]{8} ?)+)", l)
        if m:
            r.append(4 * len(m.group(1).split()))
    return r

def gen(pol="nt", stamps=0, gmap=1, fast=1, opol="", nsets=2, ppol="sc1 nt", spol="", dry=0, prepoll=1, yrot=1,
        touch=1, qpol="nt", fpol="sc1", preload=None, nohelp=0, bart=1, baru=0, probe=-1, diag=0, pp0=0, skip='', lateclr=0, pflag=0, G=4, WL=8, stag=0, prio=0, satom=0, sflag=0, ldsp=0, sml=0, pat=None, thr=0, xm=0x55, tw=3):
    if probe >= 0: stamps = 1
    NW, U = 4, 4
    NWG = 256
    RND = 16384
    MBS = 1024
    BOFF = 0x40000
    SPIN = 0x40000
    o = []
    e = o.append
    sK, sV, sQ, sO, sD, sW = 4, 8, 12, 16, 20, 24
    sHead, sSlot, sWave, sC = 28, 29, 30, 31
    sOutOff, sXcc, sOff, sFlagOff, sCnt, sT, sMb, sPass = 32, 33, 34, 35, 36, 37, 38, 39
    sG = 40
    sMask = 44
    sId, sIt = 46, 47
    nsg = 48
    vOff, vLane, vM, vL, vT0, vT1 = 1, 2, 4, 5, 6, 7
    vQ, vMask, vAcc, vP = 8, 12, 16, 20
    vMb, vFlag, vOut = 24, 25, 26
    vA = 28
    vRing = 44
    RS = 8 if WL <= 8 else 16
    nv = max(vRing + 4 * RS, vRing + 8 + 12 * nsets)
    LDS_ML = NW * 512
    lds_bytes = LDS_ML + (256 if ldsp else 64)

    def stamp(j):
        if stamps:
            e(f"    s_memrealtime s[{84+2*j}:{85+2*j}]")
    def srd(r, sz):
        e(f"    s_mov_b32 s{r+2}, {hex(sz)}")
        e(f"    s_mov_b32 s{r+3}, 0x00020000")
    def slot(u, i):
        return vRing + 4 * ((4 * u + i) % RS)
    def load(n):
        s = slot(n // 4, n % 4)
        e(f"    buffer_load_dwordx4 v[{s}:{s+3}], v{vOff}, s[{sK}:{sK+3}], s{sOff} offen offset:{(n%4)*1024} {pol}".rstrip())
        if n % 4 == 3:
            e(f"    s_add_u32 s{sOff}, s{sOff}, {hex(4*RND if pat else RND)}")
            e(f"    s_and_b32 s{sOff}, s{sOff}, {hex(0xfffff if pat else 0x3ffff)}")
    def refill(c, switch):
        for n in range(c - G + WL, c + WL):
            if n == 16:
                e(f"    s_cmp_eq_u32 s{sIt}, 3")
                e(switch)
            load(n)
    def waitn(c):
        return WL - 1 - (c % G)
    def dpp(op, d, a, b, ctl, bank=0xf):
        e(f"    {op}_dpp v{d}, v{a}, v{b} {ctl} row_mask:0xf bank_mask:{hex(bank)}")

    e(f"{NAME}:")
    stamp(0)
    e(f"    s_load_dwordx2 s[{sQ}:{sQ+1}], s[0:1], 0")
    e(f"    s_load_dwordx2 s[{sK}:{sK+1}], s[0:1], 8")
    e(f"    s_load_dwordx2 s[{sV}:{sV+1}], s[0:1], 16")
    e(f"    v_lshrrev_b32 v{vT0}, 6, v0")
    e(f"    v_and_b32 v{vLane}, 63, v0")
    e(f"    v_readfirstlane_b32 s{sWave}, v{vT0}")
    e(f"    s_cmp_ge_u32 s2, {NWG}")
    e("    s_cbranch_scc1 L_end")
    if stamps:
        e(f"    s_load_dwordx2 s[{sW}:{sW+1}], s[0:1], 40")
        srd(sW, 1 << 28)
        for j in range(1, 6):
            e(f"    s_mov_b32 s{84+2*j}, 0")
    if gmap == 0:
        e(f"    s_mov_b32 s{sId}, s2")
    else:
        e(f"    s_and_b32 s{sId}, s2, 7")
        if gmap == 2:
            e(f"    s_bfe_u32 s{sT}, s2, 0x10003")
            e(f"    s_xor_b32 s{sId}, s{sId}, s{sT}")
        e(f"    s_lshl_b32 s{sId}, s{sId}, 5")
        e(f"    s_lshr_b32 s{sT}, s2, 3")
        e(f"    s_or_b32 s{sId}, s{sId}, s{sT}")
    e(f"    s_lshr_b32 s{sHead}, s{sId}, 2")
    e(f"    s_lshl_b32 s{sOutOff}, s{sHead}, 8")
    e(f"    s_cmp_eq_u32 s{sWave}, {NW}")
    e("    s_cbranch_scc1 L_hinit" if ldsp else "    s_cbranch_scc1 L_touch0")
    e(f"    s_lshl_b32 s3, s{sHead}, 20" if pat else f"    s_lshl_b32 s3, s{sId}, 18")
    srd(sK, 1 << 26)
    srd(sQ, 16384)
    if pat:
        ax, ay = [int(x) for x in pat.split(",")]
        e(f"    s_lshr_b32 s{sOff}, s{sHead}, 3")
        e(f"    s_mul_i32 s{sOff}, s{sOff}, {(ax - 8 * ay) % 64}")
        e(f"    s_mul_i32 s{sT}, s{sHead}, {(ay - 4) % 64}")
        e(f"    s_add_u32 s{sOff}, s{sOff}, s{sT}")
        e(f"    s_add_u32 s{sOff}, s{sOff}, s{sId}")
        e(f"    s_lshl_b32 s{sOff}, s{sOff}, 14")
        e(f"    s_and_b32 s{sOff}, s{sOff}, 0xfffff")
    elif yrot:
        e(f"    s_and_b32 s{sOff}, s{sHead}, 1")
        e(f"    s_lshl_b32 s{sOff}, s{sOff}, 17")
    else:
        e(f"    s_mov_b32 s{sOff}, 0")
    e(f"    v_lshl_add_u32 v{vOff}, v{vLane}, 4, s3")
    e(f"    v_lshl_add_u32 v{vOff}, v{vT0}, 12, v{vOff}")
    e(f"    v_and_b32 v{vT1}, 15, v0")
    e(f"    v_lshlrev_b32 v{vT1}, 4, v{vT1}")
    e("    s_waitcnt lgkmcnt(0)")
    stamp(1)
    e(f"    buffer_load_dwordx4 v[{vQ}:{vQ+3}], v{vT1}, s[{sQ}:{sQ+3}], s{sOutOff} offen {qpol}".rstrip())
    for n in range(WL):
        load(n)
    if prio: e(f'    s_setprio {prio}')
    if stag:
        e(f"    s_lshr_b32 s{sCnt}, s{sHead}, 3")
        e(f"    s_add_u32 s{sCnt}, s{sCnt}, s{sHead}")
        e(f"    s_and_b32 s{sCnt}, s{sCnt}, {stag-1}")
        e(f"    s_add_u32 s{sCnt}, s{sCnt}, {16-stag}")
        e(f"    s_and_b32 s{sT}, s{sId}, 3")
        e(f"    s_cselect_b32 s{sCnt}, 64, s{sCnt}")
    e(f"    s_mov_b32 s{sMask}, 0x11111111")
    e(f"    s_mov_b32 s{sMask+1}, s{sMask}")
    e(f"    s_mov_b32 s{sIt}, 0")
    if ldsp:
        e("    s_barrier")
        e("    s_branch L_kloop")
        e("L_hinit:")
        e(f"    v_mov_b32 v{vT1}, -1")
        e(f"    v_lshlrev_b32 v{vT0}, 2, v{vLane}")
        e(f"    ds_write_b32 v{vT0}, v{vT1} offset:{LDS_ML}")
        e("    s_branch L_touch0")
        e("L_hbar:")
        e("    s_waitcnt lgkmcnt(0)")
        e("    s_barrier")
        e("    s_branch L_touch1")
    e("L_kloop:")
    for u in range(4):
        a = vA + 4 * u
        for i in range(4):
            e(f"    s_waitcnt vmcnt({waitn(4*u+i)})")
            s = slot(u, i)
            for r in range(4):
                e(f"    v_dot2_f32_bf16 v{a+i}, v{s+r}, v{vQ+r}, {'0' if r == 0 else 'v%d' % (a+i)}")
            if (4 * u + i + 1) % G == 0:
                refill(4 * u + i + 1, f"    s_cselect_b64 s[{sK}:{sK+1}], s[{sV}:{sV+1}], s[{sK}:{sK+1}]")
        if stag:
            e(f"    s_sub_u32 s{sCnt}, s{sCnt}, 1")
            e(f"    s_cbranch_scc0 L_ns{u}")
            e("    s_barrier")
            e(f"L_ns{u}:")
        dpp("v_add_f32", a, a, a, "row_ror:8", 0x3)
        dpp("v_add_f32", a + 2, a + 2, a + 2, "row_ror:8", 0x3)
        e("    s_nop 0")
        dpp("v_add_f32", a, a + 1, a + 1, "row_ror:8", 0xc)
        dpp("v_add_f32", a + 2, a + 3, a + 3, "row_ror:8", 0xc)
        e("    s_nop 0")
        dpp("v_add_f32", a, a, a, "row_half_mirror", 0x5)
        e("    s_nop 1")
        dpp("v_add_f32", a, a + 2, a + 2, "row_half_mirror", 0xa)
    e(f"    s_add_u32 s{sIt}, s{sIt}, 1")
    for ctl in ("quad_perm:[1,0,3,2]", "quad_perm:[2,3,0,1]"):
        for u in range(4):
            dpp("v_add_f32", vA + 4 * u, vA + 4 * u, vA + 4 * u, ctl)
    for u in range(4):
        e(f"    v_cndmask_b32 v{vP+u}, v{vP+u}, v{vA+4*u}, s[{sMask}:{sMask+1}]")
    e(f"    s_lshl_b64 s[{sMask}:{sMask+1}], s[{sMask}:{sMask+1}], 1")
    e(f"    s_cmp_lt_u32 s{sIt}, 4")
    e("    s_cbranch_scc1 L_kloop")
    stamp(3)
    def allreduce(v, op, fill):
        fill = list(fill)
        def pad(n):
            k = 0
            while k < n and fill:
                e(fill.pop(0)); k += 1
            if k < n:
                e(f"    s_nop {n-k-1}")
        for sh in (8, 4, 2, 1):
            pad(2)
            dpp(op, v, v, v, f"row_ror:{sh}")
        for sw in ("v_permlane32_swap_b32", "v_permlane16_swap_b32"):
            e(f"    v_mov_b32 v{vT0}, v{v}")
            pad(2)
            e(f"    {sw} v{v}, v{vT0}")
            pad(1)
            e(f"    {op} v{v}, v{v}, v{vT0}")
        for x in fill:
            e(x)
    c = math.log2(math.e) / math.sqrt(128.0)
    cbits = struct.unpack("<I", struct.pack("<f", c))[0]
    e(f"    v_max_f32 v{vM}, v{vP}, v{vP+1}")
    e(f"    v_max3_f32 v{vM}, v{vM}, v{vP+2}, v{vP+3}")
    f1 = [f"    s_mov_b32 s{sC}, {hex(cbits)}",
          f"    v_and_b32 v{vA}, 1, v0",
          f"    v_lshlrev_b32 v{vA}, 4, v{vA}",
          f"    v_mov_b32 v{vA+1}, 0xffff",
          f"    v_lshlrev_b32 v{vA}, v{vA}, v{vA+1}",
          f"    v_bfe_u32 v{vA+1}, v0, 1, 3",
          f"    v_cmp_eq_u32 s[{sG}:{sG+1}], 0, v{vA+1}",
          f"    v_cmp_eq_u32 s[{sG+2}:{sG+3}], 1, v{vA+1}",
          f"    v_cmp_eq_u32 s[{sMask}:{sMask+1}], 2, v{vA+1}",
          f"    v_cmp_eq_u32 vcc, 3, v{vA+1}",
          f"    v_cndmask_b32 v{vMask}, 0, v{vA}, s[{sG}:{sG+1}]",
          f"    v_cndmask_b32 v{vMask+1}, 0, v{vA}, s[{sG+2}:{sG+3}]",
          f"    v_cndmask_b32 v{vMask+2}, 0, v{vA}, s[{sMask}:{sMask+1}]",
          f"    v_cndmask_b32 v{vMask+3}, 0, v{vA}, vcc"]
    allreduce(vM, "v_max_f32", f1)
    e(f"    v_mul_f32 v{vM}, s{sC}, v{vM}")
    for u in range(4):
        e(f"    v_fma_f32 v{vP+u}, v{vP+u}, s{sC}, -v{vM}")
    for u in range(4):
        e(f"    v_exp_f32 v{vP+u}, v{vP+u}")
    e(f"    v_add_f32 v{vL}, v{vP}, v{vP+1}")
    e(f"    v_add_f32 v{vL}, v{vL}, v{vP+2}")
    e(f"    v_add_f32 v{vL}, v{vL}, v{vP+3}")
    f2 = [f"    v_cvt_pk_bf16_f32 v{vP+u}, v{vP+u}, v{vP+u}" for u in range(4)]
    f2 += [f"    v_mov_b32 v{vAcc+r}, 0" for r in range(4)]
    f2 += [f"    s_lshl_b32 s{sT}, s{sWave}, 9",
           f"    v_lshl_add_u32 v{vOut}, v{vLane}, 4, s{sT}",
           f"    s_lshl_b32 s{sT}, s{sWave}, 3",
           f"    v_mov_b32 v{vT1}, s{sT}",
           f"    s_mov_b32 s{sIt}, 0"]
    allreduce(vL, "v_add_f32", f2)
    if ldsp:
        e(f"    v_min_u32 v{vL}, -2, v{vL}")
        e(f"    v_min_u32 v{vM}, -2, v{vM}")
    e(f"    ds_write_b64 v{vT1}, v[{vM}:{vL}] offset:{LDS_ML}")
    if thr:
        e(f"    s_getreg_b32 s{sT}, hwreg(HW_REG_XCC_ID, 0, 3)")
        e(f"    s_lshr_b32 s{sT}, {hex(xm)}, s{sT}")
        e(f"    s_bitcmp1_b32 s{sT}, 0")
        e(f"    s_cselect_b32 s{sCnt}, {hex(thr)}, 0")
    bank = [0, 2, 1, 3]
    e("L_vloop:")
    for u in range(4):
        for i in range(4):
            for r in range(4):
                dpp("v_and_b32", vA + 4 * i + r, vP + u, vMask + r, f"row_newbcast:{4*bank[i]}")
        if u == 3:
            e("; crit begin")
        for i in range(4):
            s = slot(u, i)
            if u == 3 and i == 3:
                e(f"    s_cmp_eq_u32 s{sIt}, 3")
            e(f"    s_waitcnt vmcnt({waitn(4*u+i)})")
            e(f"    v_mfma_f32_16x16x32_bf16 v[{vAcc}:{vAcc+3}], v[{vA+4*i}:{vA+4*i+3}], v[{s}:{s+3}], v[{vAcc}:{vAcc+3}]")
            if u == 3 and i == 3:
                e("    s_cbranch_scc1 L_vdone")
            if (4 * u + i + 1) % G == 0:
                if any(thr >> (4 * t + u) & 1 for t in range(4)):
                    e(f"    s_bitcmp1_b32 s{sCnt}, {u}")
                    e(f"    s_cbranch_scc0 L_nt{u}")
                    e(f"    s_waitcnt vmcnt({tw})")
                    e(f"L_nt{u}:")
                refill(4 * u + i + 1, f"    s_cselect_b32 s{sK+2}, 0, s{sK+2}")
        e(f"    v_mov_b32_dpp v{vP+u}, v{vP+u} quad_perm:[1,2,3,0] row_mask:0xf bank_mask:0xf")
        if u == baru and not ldsp:
            e(f"    s_cmp_eq_u32 s{sIt}, {bart}")
            e("    s_cbranch_scc0 L_nobar")
            e("    s_waitcnt lgkmcnt(0)")
            e("    s_barrier")
            e("L_nobar:")
    e(f"    s_add_u32 s{sIt}, s{sIt}, 1")
    if thr:
        e(f"    s_lshr_b32 s{sCnt}, s{sCnt}, 4")
    e("    s_branch L_vloop")
    e("L_vdone:")
    e("    s_mov_b32 exec_hi, 0")
    if stamps:
        stamp(4)
        e("    s_nop 4")
    else:
        e("    s_nop 5")
    e(f"    ds_write_b128 v{vOut}, v[{vAcc}:{vAcc+3}]")
    e("    s_waitcnt lgkmcnt(0)")
    e("    s_barrier")
    e("    s_branch L_fin" if stamps else "    s_endpgm")
    e("; crit end")
    vPw = vA
    vW = vQ
    vX = vRing
    vB = vRing + 8
    vR = vP
    e("L_helper:")
    e(f"    s_load_dwordx2 s[{sW}:{sW+1}], s[0:1], 40")
    e(f"    s_load_dwordx2 s[{sD}:{sD+1}], s[0:1], 32")
    e(f"    s_load_dwordx2 s[{sO}:{sO+1}], s[0:1], 24")
    srd(sO, 16384); srd(sD, 256); srd(sW, 1 << 28)
    if nohelp == 1:
        e("    s_branch L_fin")
    if nohelp == 2:
        e(f"    v_lshlrev_b32 v{vMb}, 4, v{vLane}")
        e(f"    v_lshlrev_b32 v{vOut}, 3, v{vLane}")
        e("    s_mov_b32 exec_hi, 0")
        e("    s_waitcnt lgkmcnt(0)")
        e("    s_barrier")
        e("    s_branch L_cb2")
    e(f"    s_getreg_b32 s{sXcc}, hwreg(HW_REG_XCC_ID, 0, 4)")
    e(f"    s_or_b32 s{sXcc}, s{sXcc}, 0x80")
    if gmap == 0:
        e(f"    s_lshr_b32 s{sT}, s{sHead}, 1")
        e(f"    s_sub_u32 s{sSlot}, s{sId}, s{sT}")
        e(f"    s_and_b32 s{sSlot}, s{sSlot}, 3")
    else:
        e(f"    s_and_b32 s{sSlot}, s{sId}, 3")
    e(f"    s_lshl_b32 s{sFlagOff}, s{sHead}, 2")
    e(f"    s_add_u32 s{sMb}, s{sFlagOff}, s{sSlot}")
    e(f"    s_mul_i32 s{sMb}, s{sMb}, {MBS}")
    e(f"    v_lshlrev_b32 v{vMb}, 4, v{vLane}")
    e(f"    v_mov_b32 v{vT0}, 0")
    e(f"    s_mov_b32 s{sCnt}, {hex(SPIN)}")
    e(f"    s_cmp_eq_u32 s{sSlot}, 0")
    e("    s_cbranch_scc1 L_consumer")

    nww = [0]
    def wave_weights():
        nww[0] += 1
        e(f"L_ww{nww[0]}:")
        e(f"    ds_read_b128 v[{vW}:{vW+3}], v{vT0} offset:{LDS_ML}")
        e(f"    ds_read_b128 v[{vW+4}:{vW+7}], v{vT0} offset:{LDS_ML+16}")
        e("    s_waitcnt lgkmcnt(0)")
        if ldsp:
            e(f"    v_max_u32 v{vM}, v{vW}, v{vW+1}")
            for j in range(2, 8, 2):
                e(f"    v_max3_u32 v{vM}, v{vM}, v{vW+j}, v{vW+j+1}")
            e(f"    v_cmp_eq_u32 vcc, -1, v{vM}")
            e(f"    s_cbranch_vccnz L_ww{nww[0]}")
        e(f"    v_max_f32 v{vM}, v{vW}, v{vW+2}")
        e(f"    v_max3_f32 v{vM}, v{vM}, v{vW+4}, v{vW+6}")
        for w in range(4):
            e(f"    v_sub_f32 v{vW+2*w}, v{vW+2*w}, v{vM}")
        for w in range(4):
            e(f"    v_exp_f32 v{vW+2*w}, v{vW+2*w}")
        e(f"    v_mul_f32 v{vL}, v{vW}, v{vW+1}")
        for w in range(1, 4):
            e(f"    v_fmac_f32 v{vL}, v{vW+2*w}, v{vW+2*w+1}")
    def reduce():
        for w in range(4):
            e(f"    ds_read_b128 v[{vPw+4*w}:{vPw+4*w+3}], v{vMb} offset:{w*512}")
        for w in range(4):
            e(f"    s_waitcnt lgkmcnt({3-w})")
            for h in range(2):
                a = vAcc + 2 * h
                b = vPw + 4 * w + 2 * h
                if w == 0:
                    e(f"    v_pk_mul_f32 v[{a}:{a+1}], v[{b}:{b+1}], v[{vW}:{vW+1}] op_sel_hi:[1,0]")
                else:
                    e(f"    v_pk_fma_f32 v[{a}:{a+1}], v[{b}:{b+1}], v[{vW+2*w}:{vW+2*w+1}], v[{a}:{a+1}] op_sel_hi:[1,0,1]")
    def fin_prod():
        if stamps:
            stamp(3)
            e("    s_branch L_fin")
        else:
            e("    s_endpgm")
    def mins():
        for r in range(4):
            e(f"    v_min_u32 v{vAcc+r}, -2, v{vAcc+r}")
    e("    s_waitcnt lgkmcnt(0)")
    if not ldsp: e("    s_barrier")
    wave_weights()
    if 'f' in skip:
        e(f"    s_mov_b32 s{sT}, s{sXcc}")
        e("    s_branch L_flagok")
    if sflag:
        e(f"    s_load_dword s{sT}, s[{sD}:{sD+1}], s{sFlagOff} glc")
        e("    s_waitcnt lgkmcnt(0)")
        e(f"    s_cmp_eq_u32 s{sT}, 0")
        e("    s_cbranch_scc0 L_flagok")
    e("L_flagspin:")
    e(f"    buffer_load_dword v{vFlag}, v{vT0}, s[{sD}:{sD+3}], s{sFlagOff} offen {fpol}")
    e(f"    s_sub_u32 s{sCnt}, s{sCnt}, 1")
    e("    s_waitcnt vmcnt(0)")
    e(f"    v_readfirstlane_b32 s{sT}, v{vFlag}")
    e("    s_cbranch_scc1 L_flagok")
    e(f"    s_cmp_eq_u32 s{sT}, 0")
    e("    s_cbranch_scc1 L_flagspin")
    e("L_flagok:")
    stamp(1)
    e(f"    v_min_u32 v{vM}, -2, v{vM}")
    e(f"    v_min_u32 v{vL}, -2, v{vL}")
    e(f"    s_and_b32 s{sT}, s{sT}, 0xff")
    e("    s_mov_b64 exec, 1")
    if fast:
        e(f"    s_cmp_eq_u32 s{sT}, s{sXcc}")
        e("    s_cbranch_scc0 L_far")
        if 'm' not in skip: e(f"    buffer_store_dwordx2 v[{vM}:{vL}], v{vT0}, s[{sW}:{sW+3}], s{sMb} offen offset:512 {spol}".rstrip())
        e("    s_mov_b32 exec_lo, -1")
        if stamps:
            e("    s_waitcnt lgkmcnt(0)")
        e("; crit begin")
        if dry:
            e("    s_branch L_pbody")
            e("L_pbar:")
            e("    s_cmp_eq_u32 0, 1")
        e("    s_barrier")
        e("L_pbody:")
        reduce()
        mins()
        if dry:
            e("    s_cbranch_scc1 L_pbar")
        if 'o' in skip:
            e(f"    v_lshlrev_b32 v{vOut}, 3, v{vLane}")
            e(f"    buffer_store_dwordx2 v[{vAcc}:{vAcc+1}], v{vOut}, s[{sO}:{sO+3}], s{sOutOff} offen")
        else:
            e(f"    buffer_store_dwordx4 v[{vAcc}:{vAcc+3}], v{vMb}, s[{sW}:{sW+3}], s{sMb} offen {spol}".rstrip())
        fin_prod()
        e("; crit end")
    else:
        e("    s_branch L_far")
    e("L_consumer:")
    for r in range(4):
        e(f"    v_mov_b32 v{vAcc+r}, -1")
    e(f"    v_mov_b32 v{vFlag}, s{sXcc}")
    e("    s_mov_b32 exec_hi, 0xff")
    e("    s_waitcnt lgkmcnt(0)")
    if lateclr:
        e("    s_barrier")
    if preload is not None:
        e(f"    v_lshlrev_b32 v{vT1}, 7, v{vLane}")
        e("    s_mov_b64 exec, 0x1f1f1f")
        e(f"    buffer_load_dword v{vX}, v{vT1}, s[{sW}:{sW+3}], s{sMb} offen offset:{MBS} {preload}".rstrip())
        e("    s_mov_b32 exec_lo, -1")
        e("    s_mov_b32 exec_hi, 0xff")
        e("    s_waitcnt vmcnt(0)")
    for p in range(1, 1 if 'c' in skip else 4):
        e(f"    buffer_store_dwordx4 v[{vAcc}:{vAcc+3}], v{vMb}, s[{sW}:{sW+3}], s{sMb} offen offset:{p*MBS}")
    e(f"    v_and_b32 v{vX}, 15, v{vLane}")
    e(f"    v_lshrrev_b32 v{vT1}, 4, v{vLane}")
    e(f"    v_lshlrev_b32 v{vX}, 4, v{vX}")
    e(f"    v_lshl_add_u32 v{vOut}, v{vT1}, 3, v{vX}")
    e("    s_mov_b64 exec, 1")
    e("    s_waitcnt vmcnt(0)")
    if stag: e("    s_barrier")
    if satom:
        e(f"    s_mov_b32 s{sT}, s{sXcc}")
        e(f"    s_atomic_swap s{sT}, s[{sD}:{sD+1}], s{sFlagOff}")
        e("    s_waitcnt lgkmcnt(0)")
    elif pflag: e(f"    buffer_store_dword v{vFlag}, v{vT0}, s[{sD}:{sD+3}], s{sFlagOff} offen")
    elif 'a' not in skip: e(f"    buffer_atomic_swap v{vFlag}, v{vT0}, s[{sD}:{sD+3}], s{sFlagOff} offen sc1")
    e("    s_mov_b32 exec_lo, -1")
    e(f"    s_add_u32 s{sG}, s{sMb}, {hex(BOFF)}")
    e(f"    s_mov_b32 s{sT}, 0")
    if not lateclr and not ldsp:
        e("    s_barrier")
    if pp0:
        e(f"    v_lshlrev_b32 v{vT1}, 7, v{vLane}")
        e("    s_mov_b32 exec_lo, 0x0f0f0f")
        e(f"    buffer_load_dword v{vB}, v{vT1}, s[{sW}:{sW+3}], s{sMb} offen offset:{MBS} {ppol}")
        e("    s_mov_b32 exec_lo, -1")
    wave_weights()
    e("L_mlspin:")
    for p in range(1, 4):
        e(f"    s_bitcmp1_b32 s{sT}, {8+p}")
        e(f"    s_cselect_b32 s{sG+p}, s{sG}, s{sMb}")
    if 'l' in skip:
        e("    s_branch L_mlok")
    for p in range(1, 4):
        e(f"    buffer_load_dwordx2 v[{vX+2*p}:{vX+2*p+1}], v{vT0}, s[{sW}:{sW+3}], s{sG+p} offen offset:{p*MBS+512} {ppol}")
    e(f"    buffer_load_dword v{vFlag}, v{vT0}, s[{sD}:{sD+3}], s{sFlagOff} offen {fpol}")
    e(f"    s_sub_u32 s{sCnt}, s{sCnt}, 1")
    e("    s_waitcnt vmcnt(0)")
    e("    s_cbranch_scc1 L_mlok")
    e(f"    v_readfirstlane_b32 s{sT}, v{vFlag}")
    e(f"    v_max3_u32 v{vT1}, v{vX+2}, v{vX+3}, v{vX+4}")
    e(f"    v_max3_u32 v{vT1}, v{vT1}, v{vX+5}, v{vX+6}")
    e(f"    v_max_u32 v{vT1}, v{vT1}, v{vX+7}")
    e(f"    v_cmp_eq_u32 vcc, -1, v{vT1}")
    e("    s_cbranch_vccnz L_mlspin")
    e("L_mlok:")
    e(f"    v_max_f32 v{vT1}, v{vM}, v{vX+2}")
    e(f"    v_max3_f32 v{vT1}, v{vT1}, v{vX+4}, v{vX+6}")
    e(f"    v_sub_f32 v{vX}, v{vM}, v{vT1}")
    for p in range(1, 4):
        e(f"    v_sub_f32 v{vX+2*p}, v{vX+2*p}, v{vT1}")
    for p in range(4):
        e(f"    v_exp_f32 v{vX+2*p}, v{vX+2*p}")
    e(f"    v_mul_f32 v{vL}, v{vX}, v{vL}")
    for p in range(1, 4):
        e(f"    v_fmac_f32 v{vL}, v{vX+2*p}, v{vX+2*p+1}")
    e(f"    v_rcp_f32 v{vL}, v{vL}")
    e(f"    s_mov_b32 s{sCnt}, {hex(SPIN)}")
    for p in range(4):
        e(f"    v_mul_f32 v{vX+2*p}, v{vX+2*p}, v{vL}")
    for w in range(4):
        e(f"    v_mul_f32 v{vW+2*w}, v{vW+2*w}, v{vX}")
    def polls(st):
        for p in range(1, 4):
            b = vB + 12 * st + 4 * (p - 1)
            e(f"    buffer_load_dwordx4 v[{b}:{b+3}], v{vMb}, s[{sW}:{sW+3}], s{sG+p} offen offset:{p*MBS} {ppol}")
    def check(st, after):
        for p in range(1, 4):
            b = vB + 12 * st + 4 * (p - 1)
            e(f"    s_waitcnt vmcnt({after + 3 - p})")
            for h in range(2):
                src = vAcc + 2 * h if p == 1 else vR + 2 * h
                e(f"    v_pk_fma_f32 v[{vR+2*h}:{vR+2*h+1}], v[{b+2*h}:{b+2*h+1}], v[{vX+2*p}:{vX+2*p+1}], v[{src}:{src+1}] op_sel_hi:[1,0,1]")
            if p == 1:
                e(f"    v_max_u32 v{vT1}, v{b}, v{b+1}")
            else:
                e(f"    v_max3_u32 v{vT1}, v{vT1}, v{b}, v{b+1}")
            e(f"    v_max3_u32 v{vT1}, v{vT1}, v{b+2}, v{b+3}")
        e(f"    v_cmp_eq_u32 vcc, -1, v{vT1}")
        e(f"    v_cvt_pk_bf16_f32 v{vR}, v{vR}, v{vR+1}")
        e(f"    v_cvt_pk_bf16_f32 v{vR+1}, v{vR+2}, v{vR+3}")
    if prepoll:
        polls(0)
        e("    s_waitcnt vmcnt(0)")
    stamp(1)
    if stamps:
        e("    s_waitcnt lgkmcnt(0)")
    e("; crit begin")
    e("L_cb2:")
    e("    s_barrier")
    if diag == 2:
        reduce()
        e(f"    v_cvt_pk_bf16_f32 v{vR}, v{vAcc}, v{vAcc+1}")
        e(f"    v_cvt_pk_bf16_f32 v{vR+1}, v{vAcc+2}, v{vAcc+3}")
        e("    s_branch L_got")
    polls(0)
    reduce()
    for st in range(1, nsets):
        polls(st)
    e("L_poll:")
    for st in range(nsets):
        check(st, 3 * (nsets - 1))
        e("    s_branch L_got" if diag == 1 else "    s_cbranch_vccz L_got")
        polls(st)
    e(f"    s_sub_u32 s{sCnt}, s{sCnt}, 1")
    e("    s_cbranch_scc0 L_poll")
    e("L_got:")
    stamp(2)
    e(f"    buffer_store_dwordx2 v[{vR}:{vR+1}], v{vOut}, s[{sO}:{sO+3}], s{sOutOff} offen {opol}".rstrip())
    if stamps:
        stamp(3)
        e("    s_waitcnt vmcnt(0)")
        stamp(5)
        nsg = 100
        e("L_fin:")
        if probe >= 0:
            e("    s_branch L_probe")
        else:
            e("    s_mov_b64 exec, -1")
            e("    s_getreg_b32 s96, hwreg(HW_REG_XCC_ID)")
            e("    s_getreg_b32 s97, hwreg(HW_REG_HW_ID)")
            e("    s_waitcnt lgkmcnt(0)")
            for j in range(6):
                e(f"    v_mov_b32 v{vA+j}, s{84+2*j}")
            e(f"    v_mov_b32 v{vA+6}, s96")
            e(f"    v_mov_b32 v{vA+7}, s97")
            e(f"    s_mul_i32 s96, s2, {NW+1}")
            e(f"    s_add_u32 s96, s96, s{sWave}")
            e("    s_lshl_b32 s96, s96, 6")
            e("    s_add_u32 s96, s96, 0x100000")
            e(f"    v_mov_b32 v{vT0}, 0")
            e("    s_mov_b64 exec, 1")
            e(f"    buffer_store_dwordx4 v[{vA}:{vA+3}], v{vT0}, s[{sW}:{sW+3}], s96 offen")
            e(f"    buffer_store_dwordx4 v[{vA+4}:{vA+7}], v{vT0}, s[{sW}:{sW+3}], s96 offen offset:16")
    e("L_end:")
    e("    s_endpgm")
    e("; crit end")
    e("L_hotend:")
    e("L_far:")
    e(f"    s_add_u32 s{sMb}, s{sMb}, {hex(BOFF)}")
    e(f"    buffer_store_dwordx2 v[{vM}:{vL}], v{vT0}, s[{sW}:{sW+3}], s{sMb} offen offset:512 sc1")
    e("    s_mov_b32 exec_lo, -1")
    for r in range(4):
        e(f"    v_mov_b32 v{vAcc+r}, -1")
    e(f"    s_lshl_b32 s{sT}, 0x100, s{sSlot}")
    e(f"    v_mov_b32 v{vFlag}, s{sT}")
    e(f"    buffer_store_dwordx4 v[{vAcc}:{vAcc+3}], v{vMb}, s[{sW}:{sW+3}], s{sMb} offen sc1")
    e("    s_mov_b64 exec, 1")
    e("    s_waitcnt vmcnt(0)")
    e(f"    buffer_atomic_or v{vFlag}, v{vT0}, s[{sD}:{sD+3}], s{sFlagOff} offen sc1")
    e("    s_mov_b32 exec_lo, -1")
    if stamps:
        e("    s_waitcnt lgkmcnt(0)")
    e("    s_barrier")
    reduce()
    mins()
    e(f"    buffer_store_dwordx4 v[{vAcc}:{vAcc+3}], v{vMb}, s[{sW}:{sW+3}], s{sMb} offen sc1")
    fin_prod()
    if probe >= 0:
        def spin(lbl, base, lim):
            e(f"{lbl}:")
            e("    s_sleep 4")
            e("    s_memrealtime s[96:97]")
            e("    s_waitcnt lgkmcnt(0)")
            e(f"    s_sub_u32 s96, s96, {base}")
            e(f"    s_cmp_lt_u32 s96, {lim}")
            e(f"    s_cbranch_scc1 {lbl}")
        e("L_probe:")
        e("    s_mov_b64 exec, -1")
        e("    s_waitcnt lgkmcnt(0) vmcnt(0)")
        e(f"    v_lshlrev_b32 v{vT0}, 2, v{vLane}")
        e("    s_mov_b32 s98, 0x200000")
        e(f"    s_or_b32 s99, s2, s{sWave}")
        spin("L_sp0", "s84", 2500)
        e("    s_cmp_eq_u32 s99, 0")
        e("    s_cbranch_scc0 L_noz")
        e(f"    v_mov_b32 v{vA}, 0")
        e(f"    buffer_store_dword v{vA}, v{vT0}, s[{sW}:{sW+3}], s98 offen sc1")
        e("L_noz:")
        e(f"    v_mov_b32 v{vA+1}, 0")
        e("    s_not_b32 s96, s84")
        e(f"    v_writelane_b32 v{vA+1}, s96, 0")
        e(f"    v_writelane_b32 v{vA+1}, s84, 1")
        e(f"    v_writelane_b32 v{vA+1}, s92, 2")
        e(f"    v_writelane_b32 v{vA+1}, s94, 3")
        e("    s_not_b32 s96, s92")
        e(f"    s_cmp_eq_u32 s{sWave}, {NW}")
        e("    s_cselect_b32 s96, 0, s96")
        e(f"    v_writelane_b32 v{vA+1}, s96, 4")
        e("    s_cselect_b32 s96, 0, s90")
        e(f"    v_writelane_b32 v{vA+1}, s96, 5")
        spin("L_sp1", "s84", 3000)
        e("    s_mov_b64 exec, 63")
        e(f"    buffer_atomic_umax v{vA+1}, v{vT0}, s[{sW}:{sW+3}], s98 offen sc1")
        e("    s_cmp_eq_u32 s99, 0")
        e("    s_cbranch_scc0 L_end")
        spin("L_sp2", "s84", 5500)
        e(f"    v_mov_b32 v{vA}, 0")
        e(f"    buffer_atomic_umax v{vA}, v{vT0}, s[{sW}:{sW+3}], s98 offen sc0 sc1")
        e("    s_waitcnt vmcnt(0)")
        e(f"    v_readlane_b32 s50, v{vA}, 0")
        e(f"    v_readlane_b32 s51, v{vA}, {probe}")
        e("    s_nop 3")
        e("    s_not_b32 s50, s50")
        if probe in (0, 4):
            e("    s_not_b32 s51, s51")
        e("    s_sub_u32 s51, s51, s50")
        e("    s_min_u32 s51, s51, 4000")
        e("    s_mul_i32 s51, s51, 10")
        e("    s_add_u32 s51, s51, 6000")
        spin("L_sp3", "s50", "s51")
        e("    s_endpgm")
    assert vB + 12 * nsets <= nv
    nvg = (nv + 3) // 4 * 4
    head = HDR + f"; @launch grid=({NWG},1,1) block=({(NW+1)*64},1,1) lds={lds_bytes}\n"
    head += f'.amdgcn_target "amdgcn-amd-amdhsa--gfx950"\n.text\n.globl {NAME}\n.p2align 8\n.type {NAME},@function\n'
    tail = f""".section .rodata,"a"
.p2align 6
.amdhsa_kernel {NAME}
  .amdhsa_next_free_vgpr {nvg}
  .amdhsa_next_free_sgpr {nsg}
  .amdhsa_accum_offset {nvg}
  .amdhsa_group_segment_fixed_size 0
  .amdhsa_kernarg_size 48
  .amdhsa_user_sgpr_count 2
  .amdhsa_user_sgpr_kernarg_segment_ptr 1
  .amdhsa_system_sgpr_workgroup_id_x 1
.end_amdhsa_kernel
"""
    if not touch:
        body = [l.replace("L_touch0", "L_helper") for l in o]
        return head + "\n".join(body) + "\n" + tail
    sz = sizes(head + "\n".join(l.replace("L_touch0", "L_helper").replace("L_touch1", "L_helper") for l in o) + "\n" + tail)
    body = []
    pos = 0; k = 0; n = 0; hot = True
    prev_uncond = False
    clen = {}
    cur = None; m = 0
    for idx, l in enumerate(o):
        if l.startswith("; crit begin"): cur = idx; clen[cur] = 0
        elif l.startswith("; crit end"): cur = None
        elif is_insn(l):
            if cur is not None: clen[cur] += sz[m]
        if is_insn(l): m += 1
    for idx, l in enumerate(o):
        if l.startswith("L_hotend"):
            hot = False
        nxt = (k + 1) * REGION
        force = idx in clen and pos + clen[idx] > nxt
        if force: assert clen[idx] + 4 <= REGION
        if hot and (force or ((is_insn(l) or prev_uncond) and pos + (0 if prev_uncond else 4) >= nxt)):
            if not prev_uncond:
                body.append(f"    s_branch L_over{k}"); pos += 4
            while pos < nxt:
                body.append("    s_endpgm"); pos += 4
            assert pos + 4 <= nxt + 64
            body.append(f"L_touch{k}:")
            body.append("    s_branch L_hbar" if (ldsp and k == 0) else f"    s_branch L_touch{k+1}"); pos += 4
            if not prev_uncond:
                body.append(f"L_over{k}:")
            k += 1
        if l.startswith("; crit"):
            continue
        body.append(l)
        if is_insn(l):
            pos += sz[n]; n += 1
            prev_uncond = l.strip().startswith(("s_branch", "s_endpgm"))
        else:
            prev_uncond = False
    assert n == len(sz)
    body = [l.replace(f"L_touch{k}", "L_helper") if l.strip().endswith(f"L_touch{k}") else l for l in body]
    return head + "\n".join(body) + "\n" + tail

if __name__ == "__main__":
    out = sys.argv[1]
    kw = {}
    for a in sys.argv[2:]:
        k, v = a.split("=")
        try:
            v = int(v, 0)
        except ValueError:
            pass
        kw[k] = v
    open(out, "w").write(gen(**kw))
```

```python
import sys, math, struct, subprocess, tempfile, os, re

HDR = """; Kernarg layout for this problem (48 bytes, ptrs only, base s[0:1]):
"""
NAME = "standalone__mha_softmax__decode_kernel"
LLVM = "bin"
REGION = 768

def is_insn(l):
    s = l.split(";")[0].strip()
    return bool(s) and not s.endswith(":") and not s.startswith(".")

def sizes(text):
    with tempfile.TemporaryDirectory() as d:
        open(d + "/a.s", "w").write(text)
        subprocess.run([LLVM + "/clang", "-x", "assembler", "-target", "amdgcn-amd-amdhsa", "-mcpu=gfx950", "-c", d + "/a.s", "-o", d + "/a.o"], check=True)
        out = subprocess.run([LLVM + "/llvm-objdump", "-d", "--mcpu=gfx950", d + "/a.o"], capture_output=True, text=True, check=True).stdout
    r = []
    for l in out.splitlines():
        m = re.search(r"// [0-9A-F]{12}: ((?:[0-9A-F]{8} ?)+)", l)
        if m:
            r.append(4 * len(m.group(1).split()))
    return r

def gen(pol="nt", stamps=0, gmap=1, fast=1, opol="", nsets=2, ppol="sc1 nt", spol="", dry=0, prepoll=1, yrot=1,
        touch=1, qpol="nt", fpol="sc1", preload=None, nohelp=0, bart=1, baru=0, probe=-1, diag=0, pp0=0, skip='', lateclr=0, pflag=0, G=4, WL=8, stag=0, prio=0, satom=0, sflag=0, ldsp=0, sml=0, pat=None, thr=0, xm=0x55, tw=3, rtpat=0):
    if probe >= 0: stamps = 1
    NW, U = 4, 4
    NWG = 256
    RND = 16384
    MBS = 1024
    BOFF = 0x40000
    SPIN = 0x40000
    o = []
    e = o.append
    sK, sV, sQ, sO, sD, sW = 4, 8, 12, 16, 20, 24
    sHead, sSlot, sWave, sC = 28, 29, 30, 31
    sOutOff, sXcc, sOff, sFlagOff, sCnt, sT, sMb, sPass = 32, 33, 34, 35, 36, 37, 38, 39
    sG = 40
    sMask = 44
    sId, sIt = 46, 47
    nsg = 48
    vOff, vLane, vM, vL, vT0, vT1 = 1, 2, 4, 5, 6, 7
    vQ, vMask, vAcc, vP = 8, 12, 16, 20
    vMb, vFlag, vOut = 24, 25, 26
    vA = 28
    vRing = 44
    RS = 8 if WL <= 8 else 16
    nv = max(vRing + 4 * RS, vRing + 8 + 12 * nsets)
    LDS_ML = NW * 512
    lds_bytes = LDS_ML + (256 if ldsp else 64)

    def stamp(j):
        if stamps:
            e(f"    s_memrealtime s[{84+2*j}:{85+2*j}]")
    def srd(r, sz):
        e(f"    s_mov_b32 s{r+2}, {hex(sz)}")
        e(f"    s_mov_b32 s{r+3}, 0x00020000")
    def slot(u, i):
        return vRing + 4 * ((4 * u + i) % RS)
    def rtoff():
        e("    s_and_b32 s60, s60, 15")
        e("    s_andn2_b32 s63, s60, s61")
        e("    s_lshl_b32 s63, s63, 2")
        e(f"    s_and_b32 s{sOff}, s60, s61")
        e(f"    s_add_u32 s{sOff}, s{sOff}, s63")
        e(f"    s_add_u32 s{sOff}, s{sOff}, s62")
        e(f"    s_lshl_b32 s{sOff}, s{sOff}, 14")
        e(f"    s_and_b32 s{sOff}, s{sOff}, 0xfffff")
        e("    s_add_u32 s60, s60, 1")
    def rtoff2():
        e("    s_add_u32 s70, s70, 1")
        e("    s_mov_b32 s71, s69")
        for b in range(4):
            e(f"    s_bitcmp1_b32 s70, {b}")
            e(f"    s_cselect_b32 s68, s{58+b}, 0")
            e("    s_add_u32 s71, s71, s68")
    def load(n):
        s = slot(n // 4, n % 4)
        if rtpat == 2:
            i = n % 4
            e(f"    s_add_u32 s{sOff}, s71, s{72+i}")
            e(f"    s_and_b32 s{sOff}, s{sOff}, 0xfffff")
            e(f"    buffer_load_dwordx4 v[{s}:{s+3}], v{vOff}, s[{sK}:{sK+3}], s{sOff} offen {pol}".rstrip())
            if i == 3:
                rtoff2()
            return
        e(f"    buffer_load_dwordx4 v[{s}:{s+3}], v{vOff}, s[{sK}:{sK+3}], s{sOff} offen offset:{(n%4)*1024} {pol}".rstrip())
        if n % 4 == 3 and rtpat == 1:
            rtoff()
        elif n % 4 == 3:
            e(f"    s_add_u32 s{sOff}, s{sOff}, {hex(4*RND if pat else RND)}")
            e(f"    s_and_b32 s{sOff}, s{sOff}, {hex(0xfffff if pat else 0x3ffff)}")
    def refill(c, switch):
        for n in range(c - G + WL, c + WL):
            if n == 16:
                e(f"    s_cmp_eq_u32 s{sIt}, 3")
                e(switch)
            load(n)
    def waitn(c):
        return WL - 1 - (c % G)
    def dpp(op, d, a, b, ctl, bank=0xf):
        e(f"    {op}_dpp v{d}, v{a}, v{b} {ctl} row_mask:0xf bank_mask:{hex(bank)}")

    e(f"{NAME}:")
    stamp(0)
    e(f"    s_load_dwordx2 s[{sQ}:{sQ+1}], s[0:1], 0")
    e(f"    s_load_dwordx2 s[{sK}:{sK+1}], s[0:1], 8")
    e(f"    s_load_dwordx2 s[{sV}:{sV+1}], s[0:1], 16")
    e(f"    v_lshrrev_b32 v{vT0}, 6, v0")
    e(f"    v_and_b32 v{vLane}, 63, v0")
    e(f"    v_readfirstlane_b32 s{sWave}, v{vT0}")
    e(f"    s_cmp_ge_u32 s2, {NWG}")
    e("    s_cbranch_scc1 L_end")
    if stamps:
        e(f"    s_load_dwordx2 s[{sW}:{sW+1}], s[0:1], 40")
        srd(sW, 1 << 28)
        for j in range(1, 6):
            e(f"    s_mov_b32 s{84+2*j}, 0")
    if gmap == 0:
        e(f"    s_mov_b32 s{sId}, s2")
    else:
        e(f"    s_and_b32 s{sId}, s2, 7")
        if gmap == 2:
            e(f"    s_bfe_u32 s{sT}, s2, 0x10003")
            e(f"    s_xor_b32 s{sId}, s{sId}, s{sT}")
        e(f"    s_lshl_b32 s{sId}, s{sId}, 5")
        e(f"    s_lshr_b32 s{sT}, s2, 3")
        e(f"    s_or_b32 s{sId}, s{sId}, s{sT}")
    e(f"    s_lshr_b32 s{sHead}, s{sId}, 2")
    e(f"    s_lshl_b32 s{sOutOff}, s{sHead}, 8")
    e(f"    s_cmp_eq_u32 s{sWave}, {NW}")
    e("    s_cbranch_scc1 L_hinit" if ldsp else "    s_cbranch_scc1 L_touch0")
    e(f"    s_lshl_b32 s3, s{sHead}, 20" if (pat or rtpat) else f"    s_lshl_b32 s3, s{sId}, 18")
    srd(sK, 1 << 26)
    srd(sQ, 16384)
    if rtpat == 3:
        e(f"    s_load_dwordx2 s[{sD}:{sD+1}], s[0:1], 32")
        e(f"    s_lshl_b32 s{sT}, s{sId}, 2")
        e(f"    s_add_u32 s{sT}, s{sT}, 256")
        e("    s_waitcnt lgkmcnt(0)")
        e(f"    s_load_dword s{sOff}, s[{sD}:{sD+1}], s{sT}")
        e("    s_waitcnt lgkmcnt(0)")
        e(f"    s_and_b32 s{sOff}, s{sOff}, 0xfc000")
        pat = True
    elif rtpat == 2:
        nsg = 100
        e(f"    s_load_dwordx2 s[{sD}:{sD+1}], s[0:1], 32")
        e("    s_waitcnt lgkmcnt(0)")
        e(f"    s_load_dwordx16 s[52:67], s[{sD}:{sD+1}], 256")
        e("    s_waitcnt lgkmcnt(0)")
        e(f"    s_lshr_b32 s69, s{sHead}, 3")
        e("    s_mul_i32 s69, s69, s62")
        e(f"    s_and_b32 s68, s{sHead}, 7")
        e("    s_mul_i32 s68, s68, s63")
        e("    s_add_u32 s69, s69, s68")
        for reg, pb in ((sWave, 54), (sId, 56)):
            for b in range(2):
                e(f"    s_bitcmp1_b32 s{reg}, {b}")
                e(f"    s_cselect_b32 s68, s{pb+b}, 0")
                e("    s_add_u32 s69, s69, s68")
        e("    s_mov_b32 s72, 0")
        e("    s_mov_b32 s73, s52")
        e("    s_mov_b32 s74, s53")
        e("    s_add_u32 s75, s52, s53")
        e("    s_mov_b32 s70, 0")
        e("    s_mov_b32 s71, s69")
    elif rtpat:
        nsg = 100
        e(f"    s_load_dwordx2 s[{sD}:{sD+1}], s[0:1], 32")
        e("    s_waitcnt lgkmcnt(0)")
        e(f"    s_load_dwordx4 s[52:55], s[{sD}:{sD+1}], 256")
        e("    s_waitcnt lgkmcnt(0)")
        e(f"    s_lshr_b32 s62, s{sHead}, 3")
        e("    s_mul_i32 s62, s62, s53")
        e(f"    s_and_b32 s63, s{sHead}, 7")
        e("    s_mul_i32 s63, s63, s54")
        e("    s_add_u32 s62, s62, s63")
        e(f"    s_and_b32 s63, s{sId}, 3")
        e("    s_mul_i32 s60, s63, s55")
        e("    s_lshl_b32 s63, s63, s52")
        e("    s_add_u32 s62, s62, s63")
        e("    s_lshl_b32 s61, 1, s52")
        e("    s_sub_u32 s61, s61, 1")
        rtoff()
    elif pat:
        ax, ay = [int(x) for x in pat.split(",")]
        e(f"    s_lshr_b32 s{sOff}, s{sHead}, 3")
        e(f"    s_mul_i32 s{sOff}, s{sOff}, {(ax - 8 * ay) % 64}")
        e(f"    s_mul_i32 s{sT}, s{sHead}, {(ay - 4) % 64}")
        e(f"    s_add_u32 s{sOff}, s{sOff}, s{sT}")
        e(f"    s_add_u32 s{sOff}, s{sOff}, s{sId}")
        e(f"    s_lshl_b32 s{sOff}, s{sOff}, 14")
        e(f"    s_and_b32 s{sOff}, s{sOff}, 0xfffff")
    elif yrot:
        e(f"    s_and_b32 s{sOff}, s{sHead}, 1")
        e(f"    s_lshl_b32 s{sOff}, s{sOff}, 17")
    else:
        e(f"    s_mov_b32 s{sOff}, 0")
    e(f"    v_lshl_add_u32 v{vOff}, v{vLane}, 4, s3")
    if rtpat != 2: e(f"    v_lshl_add_u32 v{vOff}, v{vT0}, 12, v{vOff}")
    e(f"    v_and_b32 v{vT1}, 15, v0")
    e(f"    v_lshlrev_b32 v{vT1}, 4, v{vT1}")
    e("    s_waitcnt lgkmcnt(0)")
    stamp(1)
    e(f"    buffer_load_dwordx4 v[{vQ}:{vQ+3}], v{vT1}, s[{sQ}:{sQ+3}], s{sOutOff} offen {qpol}".rstrip())
    for n in range(WL):
        load(n)
    if prio: e(f'    s_setprio {prio}')
    if stag:
        e(f"    s_lshr_b32 s{sCnt}, s{sHead}, 3")
        e(f"    s_add_u32 s{sCnt}, s{sCnt}, s{sHead}")
        e(f"    s_and_b32 s{sCnt}, s{sCnt}, {stag-1}")
        e(f"    s_add_u32 s{sCnt}, s{sCnt}, {16-stag}")
        e(f"    s_and_b32 s{sT}, s{sId}, 3")
        e(f"    s_cselect_b32 s{sCnt}, 64, s{sCnt}")
    e(f"    s_mov_b32 s{sMask}, 0x11111111")
    e(f"    s_mov_b32 s{sMask+1}, s{sMask}")
    e(f"    s_mov_b32 s{sIt}, 0")
    if ldsp:
        e("    s_barrier")
        e("    s_branch L_kloop")
        e("L_hinit:")
        e(f"    v_mov_b32 v{vT1}, -1")
        e(f"    v_lshlrev_b32 v{vT0}, 2, v{vLane}")
        e(f"    ds_write_b32 v{vT0}, v{vT1} offset:{LDS_ML}")
        e("    s_branch L_touch0")
        e("L_hbar:")
        e("    s_waitcnt lgkmcnt(0)")
        e("    s_barrier")
        e("    s_branch L_touch1")
    e("L_kloop:")
    for u in range(4):
        a = vA + 4 * u
        for i in range(4):
            e(f"    s_waitcnt vmcnt({waitn(4*u+i)})")
            s = slot(u, i)
            for r in range(4):
                e(f"    v_dot2_f32_bf16 v{a+i}, v{s+r}, v{vQ+r}, {'0' if r == 0 else 'v%d' % (a+i)}")
            if (4 * u + i + 1) % G == 0:
                refill(4 * u + i + 1, f"    s_cselect_b64 s[{sK}:{sK+1}], s[{sV}:{sV+1}], s[{sK}:{sK+1}]")
        if stag:
            e(f"    s_sub_u32 s{sCnt}, s{sCnt}, 1")
            e(f"    s_cbranch_scc0 L_ns{u}")
            e("    s_barrier")
            e(f"L_ns{u}:")
        dpp("v_add_f32", a, a, a, "row_ror:8", 0x3)
        dpp("v_add_f32", a + 2, a + 2, a + 2, "row_ror:8", 0x3)
        e("    s_nop 0")
        dpp("v_add_f32", a, a + 1, a + 1, "row_ror:8", 0xc)
        dpp("v_add_f32", a + 2, a + 3, a + 3, "row_ror:8", 0xc)
        e("    s_nop 0")
        dpp("v_add_f32", a, a, a, "row_half_mirror", 0x5)
        e("    s_nop 1")
        dpp("v_add_f32", a, a + 2, a + 2, "row_half_mirror", 0xa)
    e(f"    s_add_u32 s{sIt}, s{sIt}, 1")
    for ctl in ("quad_perm:[1,0,3,2]", "quad_perm:[2,3,0,1]"):
        for u in range(4):
            dpp("v_add_f32", vA + 4 * u, vA + 4 * u, vA + 4 * u, ctl)
    for u in range(4):
        e(f"    v_cndmask_b32 v{vP+u}, v{vP+u}, v{vA+4*u}, s[{sMask}:{sMask+1}]")
    e(f"    s_lshl_b64 s[{sMask}:{sMask+1}], s[{sMask}:{sMask+1}], 1")
    e(f"    s_cmp_lt_u32 s{sIt}, 4")
    e("    s_cbranch_scc1 L_kloop")
    stamp(3)
    def allreduce(v, op, fill):
        fill = list(fill)
        def pad(n):
            k = 0
            while k < n and fill:
                e(fill.pop(0)); k += 1
            if k < n:
                e(f"    s_nop {n-k-1}")
        for sh in (8, 4, 2, 1):
            pad(2)
            dpp(op, v, v, v, f"row_ror:{sh}")
        for sw in ("v_permlane32_swap_b32", "v_permlane16_swap_b32"):
            e(f"    v_mov_b32 v{vT0}, v{v}")
            pad(2)
            e(f"    {sw} v{v}, v{vT0}")
            pad(1)
            e(f"    {op} v{v}, v{v}, v{vT0}")
        for x in fill:
            e(x)
    c = math.log2(math.e) / math.sqrt(128.0)
    cbits = struct.unpack("<I", struct.pack("<f", c))[0]
    e(f"    v_max_f32 v{vM}, v{vP}, v{vP+1}")
    e(f"    v_max3_f32 v{vM}, v{vM}, v{vP+2}, v{vP+3}")
    f1 = [f"    s_mov_b32 s{sC}, {hex(cbits)}",
          f"    v_and_b32 v{vA}, 1, v0",
          f"    v_lshlrev_b32 v{vA}, 4, v{vA}",
          f"    v_mov_b32 v{vA+1}, 0xffff",
          f"    v_lshlrev_b32 v{vA}, v{vA}, v{vA+1}",
          f"    v_bfe_u32 v{vA+1}, v0, 1, 3",
          f"    v_cmp_eq_u32 s[{sG}:{sG+1}], 0, v{vA+1}",
          f"    v_cmp_eq_u32 s[{sG+2}:{sG+3}], 1, v{vA+1}",
          f"    v_cmp_eq_u32 s[{sMask}:{sMask+1}], 2, v{vA+1}",
          f"    v_cmp_eq_u32 vcc, 3, v{vA+1}",
          f"    v_cndmask_b32 v{vMask}, 0, v{vA}, s[{sG}:{sG+1}]",
          f"    v_cndmask_b32 v{vMask+1}, 0, v{vA}, s[{sG+2}:{sG+3}]",
          f"    v_cndmask_b32 v{vMask+2}, 0, v{vA}, s[{sMask}:{sMask+1}]",
          f"    v_cndmask_b32 v{vMask+3}, 0, v{vA}, vcc"]
    allreduce(vM, "v_max_f32", f1)
    e(f"    v_mul_f32 v{vM}, s{sC}, v{vM}")
    for u in range(4):
        e(f"    v_fma_f32 v{vP+u}, v{vP+u}, s{sC}, -v{vM}")
    for u in range(4):
        e(f"    v_exp_f32 v{vP+u}, v{vP+u}")
    e(f"    v_add_f32 v{vL}, v{vP}, v{vP+1}")
    e(f"    v_add_f32 v{vL}, v{vL}, v{vP+2}")
    e(f"    v_add_f32 v{vL}, v{vL}, v{vP+3}")
    f2 = [f"    v_cvt_pk_bf16_f32 v{vP+u}, v{vP+u}, v{vP+u}" for u in range(4)]
    f2 += [f"    v_mov_b32 v{vAcc+r}, 0" for r in range(4)]
    f2 += [f"    s_lshl_b32 s{sT}, s{sWave}, 9",
           f"    v_lshl_add_u32 v{vOut}, v{vLane}, 4, s{sT}",
           f"    s_lshl_b32 s{sT}, s{sWave}, 3",
           f"    v_mov_b32 v{vT1}, s{sT}",
           f"    s_mov_b32 s{sIt}, 0"]
    allreduce(vL, "v_add_f32", f2)
    if ldsp:
        e(f"    v_min_u32 v{vL}, -2, v{vL}")
        e(f"    v_min_u32 v{vM}, -2, v{vM}")
    e(f"    ds_write_b64 v{vT1}, v[{vM}:{vL}] offset:{LDS_ML}")
    if thr:
        e(f"    s_getreg_b32 s{sT}, hwreg(HW_REG_XCC_ID, 0, 3)")
        e(f"    s_lshr_b32 s{sT}, {hex(xm)}, s{sT}")
        e(f"    s_bitcmp1_b32 s{sT}, 0")
        e(f"    s_cselect_b32 s{sCnt}, {hex(thr)}, 0")
    bank = [0, 2, 1, 3]
    e("L_vloop:")
    for u in range(4):
        for i in range(4):
            for r in range(4):
                dpp("v_and_b32", vA + 4 * i + r, vP + u, vMask + r, f"row_newbcast:{4*bank[i]}")
        if u == 3:
            e("; crit begin")
        for i in range(4):
            s = slot(u, i)
            if u == 3 and i == 3:
                e(f"    s_cmp_eq_u32 s{sIt}, 3")
            e(f"    s_waitcnt vmcnt({waitn(4*u+i)})")
            e(f"    v_mfma_f32_16x16x32_bf16 v[{vAcc}:{vAcc+3}], v[{vA+4*i}:{vA+4*i+3}], v[{s}:{s+3}], v[{vAcc}:{vAcc+3}]")
            if u == 3 and i == 3:
                e("    s_cbranch_scc1 L_vdone")
            if (4 * u + i + 1) % G == 0:
                if any(thr >> (4 * t + u) & 1 for t in range(4)):
                    e(f"    s_bitcmp1_b32 s{sCnt}, {u}")
                    e(f"    s_cbranch_scc0 L_nt{u}")
                    e(f"    s_waitcnt vmcnt({tw})")
                    e(f"L_nt{u}:")
                refill(4 * u + i + 1, f"    s_cselect_b32 s{sK+2}, 0, s{sK+2}")
        e(f"    v_mov_b32_dpp v{vP+u}, v{vP+u} quad_perm:[1,2,3,0] row_mask:0xf bank_mask:0xf")
        if u == baru and not ldsp:
            e(f"    s_cmp_eq_u32 s{sIt}, {bart}")
            e("    s_cbranch_scc0 L_nobar")
            e("    s_waitcnt lgkmcnt(0)")
            e("    s_barrier")
            e("L_nobar:")
    e(f"    s_add_u32 s{sIt}, s{sIt}, 1")
    if thr:
        e(f"    s_lshr_b32 s{sCnt}, s{sCnt}, 4")
    e("    s_branch L_vloop")
    e("L_vdone:")
    e("    s_mov_b32 exec_hi, 0")
    if stamps:
        stamp(4)
        e("    s_nop 4")
    else:
        e("    s_nop 5")
    e(f"    ds_write_b128 v{vOut}, v[{vAcc}:{vAcc+3}]")
    e("    s_waitcnt lgkmcnt(0)")
    e("    s_barrier")
    e("    s_branch L_fin" if stamps else "    s_endpgm")
    e("; crit end")
    vPw = vA
    vW = vQ
    vX = vRing
    vB = vRing + 8
    vR = vP
    e("L_helper:")
    e(f"    s_load_dwordx2 s[{sW}:{sW+1}], s[0:1], 40")
    e(f"    s_load_dwordx2 s[{sD}:{sD+1}], s[0:1], 32")
    e(f"    s_load_dwordx2 s[{sO}:{sO+1}], s[0:1], 24")
    srd(sO, 16384); srd(sD, 256); srd(sW, 1 << 28)
    if nohelp == 1:
        e("    s_branch L_fin")
    if nohelp == 2:
        e(f"    v_lshlrev_b32 v{vMb}, 4, v{vLane}")
        e(f"    v_lshlrev_b32 v{vOut}, 3, v{vLane}")
        e("    s_mov_b32 exec_hi, 0")
        e("    s_waitcnt lgkmcnt(0)")
        e("    s_barrier")
        e("    s_branch L_cb2")
    e(f"    s_getreg_b32 s{sXcc}, hwreg(HW_REG_XCC_ID, 0, 4)")
    e(f"    s_or_b32 s{sXcc}, s{sXcc}, 0x80")
    if gmap == 0:
        e(f"    s_lshr_b32 s{sT}, s{sHead}, 1")
        e(f"    s_sub_u32 s{sSlot}, s{sId}, s{sT}")
        e(f"    s_and_b32 s{sSlot}, s{sSlot}, 3")
    else:
        e(f"    s_and_b32 s{sSlot}, s{sId}, 3")
    e(f"    s_lshl_b32 s{sFlagOff}, s{sHead}, 2")
    e(f"    s_add_u32 s{sMb}, s{sFlagOff}, s{sSlot}")
    e(f"    s_mul_i32 s{sMb}, s{sMb}, {MBS}")
    e(f"    v_lshlrev_b32 v{vMb}, 4, v{vLane}")
    e(f"    v_mov_b32 v{vT0}, 0")
    e(f"    s_mov_b32 s{sCnt}, {hex(SPIN)}")
    e(f"    s_cmp_eq_u32 s{sSlot}, 0")
    e("    s_cbranch_scc1 L_consumer")

    nww = [0]
    def wave_weights():
        nww[0] += 1
        e(f"L_ww{nww[0]}:")
        e(f"    ds_read_b128 v[{vW}:{vW+3}], v{vT0} offset:{LDS_ML}")
        e(f"    ds_read_b128 v[{vW+4}:{vW+7}], v{vT0} offset:{LDS_ML+16}")
        e("    s_waitcnt lgkmcnt(0)")
        if ldsp:
            e(f"    v_max_u32 v{vM}, v{vW}, v{vW+1}")
            for j in range(2, 8, 2):
                e(f"    v_max3_u32 v{vM}, v{vM}, v{vW+j}, v{vW+j+1}")
            e(f"    v_cmp_eq_u32 vcc, -1, v{vM}")
            e(f"    s_cbranch_vccnz L_ww{nww[0]}")
        e(f"    v_max_f32 v{vM}, v{vW}, v{vW+2}")
        e(f"    v_max3_f32 v{vM}, v{vM}, v{vW+4}, v{vW+6}")
        for w in range(4):
            e(f"    v_sub_f32 v{vW+2*w}, v{vW+2*w}, v{vM}")
        for w in range(4):
            e(f"    v_exp_f32 v{vW+2*w}, v{vW+2*w}")
        e(f"    v_mul_f32 v{vL}, v{vW}, v{vW+1}")
        for w in range(1, 4):
            e(f"    v_fmac_f32 v{vL}, v{vW+2*w}, v{vW+2*w+1}")
    def reduce():
        for w in range(4):
            e(f"    ds_read_b128 v[{vPw+4*w}:{vPw+4*w+3}], v{vMb} offset:{w*512}")
        for w in range(4):
            e(f"    s_waitcnt lgkmcnt({3-w})")
            for h in range(2):
                a = vAcc + 2 * h
                b = vPw + 4 * w + 2 * h
                if w == 0:
                    e(f"    v_pk_mul_f32 v[{a}:{a+1}], v[{b}:{b+1}], v[{vW}:{vW+1}] op_sel_hi:[1,0]")
                else:
                    e(f"    v_pk_fma_f32 v[{a}:{a+1}], v[{b}:{b+1}], v[{vW+2*w}:{vW+2*w+1}], v[{a}:{a+1}] op_sel_hi:[1,0,1]")
    def fin_prod():
        if stamps:
            stamp(3)
            e("    s_branch L_fin")
        else:
            e("    s_endpgm")
    def mins():
        for r in range(4):
            e(f"    v_min_u32 v{vAcc+r}, -2, v{vAcc+r}")
    e("    s_waitcnt lgkmcnt(0)")
    if not ldsp: e("    s_barrier")
    wave_weights()
    if 'f' in skip:
        e(f"    s_mov_b32 s{sT}, s{sXcc}")
        e("    s_branch L_flagok")
    if sflag:
        e(f"    s_load_dword s{sT}, s[{sD}:{sD+1}], s{sFlagOff} glc")
        e("    s_waitcnt lgkmcnt(0)")
        e(f"    s_cmp_eq_u32 s{sT}, 0")
        e("    s_cbranch_scc0 L_flagok")
    e("L_flagspin:")
    e(f"    buffer_load_dword v{vFlag}, v{vT0}, s[{sD}:{sD+3}], s{sFlagOff} offen {fpol}")
    e(f"    s_sub_u32 s{sCnt}, s{sCnt}, 1")
    e("    s_waitcnt vmcnt(0)")
    e(f"    v_readfirstlane_b32 s{sT}, v{vFlag}")
    e("    s_cbranch_scc1 L_flagok")
    e(f"    s_cmp_eq_u32 s{sT}, 0")
    e("    s_cbranch_scc1 L_flagspin")
    e("L_flagok:")
    stamp(1)
    e(f"    v_min_u32 v{vM}, -2, v{vM}")
    e(f"    v_min_u32 v{vL}, -2, v{vL}")
    e(f"    s_and_b32 s{sT}, s{sT}, 0xff")
    e("    s_mov_b64 exec, 1")
    if fast:
        e(f"    s_cmp_eq_u32 s{sT}, s{sXcc}")
        e("    s_cbranch_scc0 L_far")
        if 'm' not in skip: e(f"    buffer_store_dwordx2 v[{vM}:{vL}], v{vT0}, s[{sW}:{sW+3}], s{sMb} offen offset:512 {spol}".rstrip())
        e("    s_mov_b32 exec_lo, -1")
        if stamps:
            e("    s_waitcnt lgkmcnt(0)")
        e("; crit begin")
        if dry:
            e("    s_branch L_pbody")
            e("L_pbar:")
            e("    s_cmp_eq_u32 0, 1")
        e("    s_barrier")
        e("L_pbody:")
        reduce()
        mins()
        if dry:
            e("    s_cbranch_scc1 L_pbar")
        if 'o' in skip:
            e(f"    v_lshlrev_b32 v{vOut}, 3, v{vLane}")
            e(f"    buffer_store_dwordx2 v[{vAcc}:{vAcc+1}], v{vOut}, s[{sO}:{sO+3}], s{sOutOff} offen")
        else:
            e(f"    buffer_store_dwordx4 v[{vAcc}:{vAcc+3}], v{vMb}, s[{sW}:{sW+3}], s{sMb} offen {spol}".rstrip())
        fin_prod()
        e("; crit end")
    else:
        e("    s_branch L_far")
    e("L_consumer:")
    for r in range(4):
        e(f"    v_mov_b32 v{vAcc+r}, -1")
    e(f"    v_mov_b32 v{vFlag}, s{sXcc}")
    e("    s_mov_b32 exec_hi, 0xff")
    e("    s_waitcnt lgkmcnt(0)")
    if lateclr:
        e("    s_barrier")
    if preload is not None:
        e(f"    v_lshlrev_b32 v{vT1}, 7, v{vLane}")
        e("    s_mov_b64 exec, 0x1f1f1f")
        e(f"    buffer_load_dword v{vX}, v{vT1}, s[{sW}:{sW+3}], s{sMb} offen offset:{MBS} {preload}".rstrip())
        e("    s_mov_b32 exec_lo, -1")
        e("    s_mov_b32 exec_hi, 0xff")
        e("    s_waitcnt vmcnt(0)")
    for p in range(1, 1 if 'c' in skip else 4):
        e(f"    buffer_store_dwordx4 v[{vAcc}:{vAcc+3}], v{vMb}, s[{sW}:{sW+3}], s{sMb} offen offset:{p*MBS}")
    e(f"    v_and_b32 v{vX}, 15, v{vLane}")
    e(f"    v_lshrrev_b32 v{vT1}, 4, v{vLane}")
    e(f"    v_lshlrev_b32 v{vX}, 4, v{vX}")
    e(f"    v_lshl_add_u32 v{vOut}, v{vT1}, 3, v{vX}")
    e("    s_mov_b64 exec, 1")
    e("    s_waitcnt vmcnt(0)")
    if stag: e("    s_barrier")
    if satom:
        e(f"    s_mov_b32 s{sT}, s{sXcc}")
        e(f"    s_atomic_swap s{sT}, s[{sD}:{sD+1}], s{sFlagOff}")
        e("    s_waitcnt lgkmcnt(0)")
    elif pflag: e(f"    buffer_store_dword v{vFlag}, v{vT0}, s[{sD}:{sD+3}], s{sFlagOff} offen")
    elif 'a' not in skip: e(f"    buffer_atomic_swap v{vFlag}, v{vT0}, s[{sD}:{sD+3}], s{sFlagOff} offen sc1")
    e("    s_mov_b32 exec_lo, -1")
    e(f"    s_add_u32 s{sG}, s{sMb}, {hex(BOFF)}")
    e(f"    s_mov_b32 s{sT}, 0")
    if not lateclr and not ldsp:
        e("    s_barrier")
    if pp0:
        e(f"    v_lshlrev_b32 v{vT1}, 7, v{vLane}")
        e("    s_mov_b32 exec_lo, 0x0f0f0f")
        e(f"    buffer_load_dword v{vB}, v{vT1}, s[{sW}:{sW+3}], s{sMb} offen offset:{MBS} {ppol}")
        e("    s_mov_b32 exec_lo, -1")
    wave_weights()
    e("L_mlspin:")
    for p in range(1, 4):
        e(f"    s_bitcmp1_b32 s{sT}, {8+p}")
        e(f"    s_cselect_b32 s{sG+p}, s{sG}, s{sMb}")
    if 'l' in skip:
        e("    s_branch L_mlok")
    for p in range(1, 4):
        e(f"    buffer_load_dwordx2 v[{vX+2*p}:{vX+2*p+1}], v{vT0}, s[{sW}:{sW+3}], s{sG+p} offen offset:{p*MBS+512} {ppol}")
    e(f"    buffer_load_dword v{vFlag}, v{vT0}, s[{sD}:{sD+3}], s{sFlagOff} offen {fpol}")
    e(f"    s_sub_u32 s{sCnt}, s{sCnt}, 1")
    e("    s_waitcnt vmcnt(0)")
    e("    s_cbranch_scc1 L_mlok")
    e(f"    v_readfirstlane_b32 s{sT}, v{vFlag}")
    e(f"    v_max3_u32 v{vT1}, v{vX+2}, v{vX+3}, v{vX+4}")
    e(f"    v_max3_u32 v{vT1}, v{vT1}, v{vX+5}, v{vX+6}")
    e(f"    v_max_u32 v{vT1}, v{vT1}, v{vX+7}")
    e(f"    v_cmp_eq_u32 vcc, -1, v{vT1}")
    e("    s_cbranch_vccnz L_mlspin")
    e("L_mlok:")
    e(f"    v_max_f32 v{vT1}, v{vM}, v{vX+2}")
    e(f"    v_max3_f32 v{vT1}, v{vT1}, v{vX+4}, v{vX+6}")
    e(f"    v_sub_f32 v{vX}, v{vM}, v{vT1}")
    for p in range(1, 4):
        e(f"    v_sub_f32 v{vX+2*p}, v{vX+2*p}, v{vT1}")
    for p in range(4):
        e(f"    v_exp_f32 v{vX+2*p}, v{vX+2*p}")
    e(f"    v_mul_f32 v{vL}, v{vX}, v{vL}")
    for p in range(1, 4):
        e(f"    v_fmac_f32 v{vL}, v{vX+2*p}, v{vX+2*p+1}")
    e(f"    v_rcp_f32 v{vL}, v{vL}")
    e(f"    s_mov_b32 s{sCnt}, {hex(SPIN)}")
    for p in range(4):
        e(f"    v_mul_f32 v{vX+2*p}, v{vX+2*p}, v{vL}")
    for w in range(4):
        e(f"    v_mul_f32 v{vW+2*w}, v{vW+2*w}, v{vX}")
    def polls(st):
        for p in range(1, 4):
            b = vB + 12 * st + 4 * (p - 1)
            e(f"    buffer_load_dwordx4 v[{b}:{b+3}], v{vMb}, s[{sW}:{sW+3}], s{sG+p} offen offset:{p*MBS} {ppol}")
    def check(st, after):
        for p in range(1, 4):
            b = vB + 12 * st + 4 * (p - 1)
            e(f"    s_waitcnt vmcnt({after + 3 - p})")
            for h in range(2):
                src = vAcc + 2 * h if p == 1 else vR + 2 * h
                e(f"    v_pk_fma_f32 v[{vR+2*h}:{vR+2*h+1}], v[{b+2*h}:{b+2*h+1}], v[{vX+2*p}:{vX+2*p+1}], v[{src}:{src+1}] op_sel_hi:[1,0,1]")
            if p == 1:
                e(f"    v_max_u32 v{vT1}, v{b}, v{b+1}")
            else:
                e(f"    v_max3_u32 v{vT1}, v{vT1}, v{b}, v{b+1}")
            e(f"    v_max3_u32 v{vT1}, v{vT1}, v{b+2}, v{b+3}")
        e(f"    v_cmp_eq_u32 vcc, -1, v{vT1}")
        e(f"    v_cvt_pk_bf16_f32 v{vR}, v{vR}, v{vR+1}")
        e(f"    v_cvt_pk_bf16_f32 v{vR+1}, v{vR+2}, v{vR+3}")
    if prepoll:
        polls(0)
        e("    s_waitcnt vmcnt(0)")
    stamp(1)
    if stamps:
        e("    s_waitcnt lgkmcnt(0)")
    e("; crit begin")
    e("L_cb2:")
    e("    s_barrier")
    if diag == 2:
        reduce()
        e(f"    v_cvt_pk_bf16_f32 v{vR}, v{vAcc}, v{vAcc+1}")
        e(f"    v_cvt_pk_bf16_f32 v{vR+1}, v{vAcc+2}, v{vAcc+3}")
        e("    s_branch L_got")
    polls(0)
    reduce()
    for st in range(1, nsets):
        polls(st)
    e("L_poll:")
    for st in range(nsets):
        check(st, 3 * (nsets - 1))
        e("    s_branch L_got" if diag == 1 else "    s_cbranch_vccz L_got")
        polls(st)
    e(f"    s_sub_u32 s{sCnt}, s{sCnt}, 1")
    e("    s_cbranch_scc0 L_poll")
    e("L_got:")
    stamp(2)
    e(f"    buffer_store_dwordx2 v[{vR}:{vR+1}], v{vOut}, s[{sO}:{sO+3}], s{sOutOff} offen {opol}".rstrip())
    if stamps:
        stamp(3)
        e("    s_waitcnt vmcnt(0)")
        stamp(5)
        nsg = 100
        e("L_fin:")
        if probe >= 0:
            e("    s_branch L_probe")
        else:
            e("    s_mov_b64 exec, -1")
            e("    s_getreg_b32 s96, hwreg(HW_REG_XCC_ID)")
            e("    s_getreg_b32 s97, hwreg(HW_REG_HW_ID)")
            e("    s_waitcnt lgkmcnt(0)")
            for j in range(6):
                e(f"    v_mov_b32 v{vA+j}, s{84+2*j}")
            e(f"    v_mov_b32 v{vA+6}, s96")
            e(f"    v_mov_b32 v{vA+7}, s97")
            e(f"    s_mul_i32 s96, s2, {NW+1}")
            e(f"    s_add_u32 s96, s96, s{sWave}")
            e("    s_lshl_b32 s96, s96, 6")
            e("    s_add_u32 s96, s96, 0x100000")
            e(f"    v_mov_b32 v{vT0}, 0")
            e("    s_mov_b64 exec, 1")
            e(f"    buffer_store_dwordx4 v[{vA}:{vA+3}], v{vT0}, s[{sW}:{sW+3}], s96 offen")
            e(f"    buffer_store_dwordx4 v[{vA+4}:{vA+7}], v{vT0}, s[{sW}:{sW+3}], s96 offen offset:16")
    e("L_end:")
    e("    s_endpgm")
    e("; crit end")
    e("L_hotend:")
    e("L_far:")
    e(f"    s_add_u32 s{sMb}, s{sMb}, {hex(BOFF)}")
    e(f"    buffer_store_dwordx2 v[{vM}:{vL}], v{vT0}, s[{sW}:{sW+3}], s{sMb} offen offset:512 sc1")
    e("    s_mov_b32 exec_lo, -1")
    for r in range(4):
        e(f"    v_mov_b32 v{vAcc+r}, -1")
    e(f"    s_lshl_b32 s{sT}, 0x100, s{sSlot}")
    e(f"    v_mov_b32 v{vFlag}, s{sT}")
    e(f"    buffer_store_dwordx4 v[{vAcc}:{vAcc+3}], v{vMb}, s[{sW}:{sW+3}], s{sMb} offen sc1")
    e("    s_mov_b64 exec, 1")
    e("    s_waitcnt vmcnt(0)")
    e(f"    buffer_atomic_or v{vFlag}, v{vT0}, s[{sD}:{sD+3}], s{sFlagOff} offen sc1")
    e("    s_mov_b32 exec_lo, -1")
    if stamps:
        e("    s_waitcnt lgkmcnt(0)")
    e("    s_barrier")
    reduce()
    mins()
    e(f"    buffer_store_dwordx4 v[{vAcc}:{vAcc+3}], v{vMb}, s[{sW}:{sW+3}], s{sMb} offen sc1")
    fin_prod()
    if probe >= 0:
        def spin(lbl, base, lim):
            e(f"{lbl}:")
            e("    s_sleep 4")
            e("    s_memrealtime s[96:97]")
            e("    s_waitcnt lgkmcnt(0)")
            e(f"    s_sub_u32 s96, s96, {base}")
            e(f"    s_cmp_lt_u32 s96, {lim}")
            e(f"    s_cbranch_scc1 {lbl}")
        e("L_probe:")
        e("    s_mov_b64 exec, -1")
        e("    s_waitcnt lgkmcnt(0) vmcnt(0)")
        e(f"    v_lshlrev_b32 v{vT0}, 2, v{vLane}")
        e("    s_mov_b32 s98, 0x200000")
        e(f"    s_or_b32 s99, s2, s{sWave}")
        spin("L_sp0", "s84", 2500)
        e("    s_cmp_eq_u32 s99, 0")
        e("    s_cbranch_scc0 L_noz")
        e(f"    v_mov_b32 v{vA}, 0")
        e(f"    buffer_store_dword v{vA}, v{vT0}, s[{sW}:{sW+3}], s98 offen sc1")
        e("L_noz:")
        e(f"    v_mov_b32 v{vA+1}, 0")
        e("    s_not_b32 s96, s84")
        e(f"    v_writelane_b32 v{vA+1}, s96, 0")
        e(f"    v_writelane_b32 v{vA+1}, s84, 1")
        e(f"    v_writelane_b32 v{vA+1}, s92, 2")
        e(f"    v_writelane_b32 v{vA+1}, s94, 3")
        e("    s_not_b32 s96, s92")
        e(f"    s_cmp_eq_u32 s{sWave}, {NW}")
        e("    s_cselect_b32 s96, 0, s96")
        e(f"    v_writelane_b32 v{vA+1}, s96, 4")
        e("    s_cselect_b32 s96, 0, s90")
        e(f"    v_writelane_b32 v{vA+1}, s96, 5")
        spin("L_sp1", "s84", 3000)
        e("    s_mov_b64 exec, 63")
        e(f"    buffer_atomic_umax v{vA+1}, v{vT0}, s[{sW}:{sW+3}], s98 offen sc1")
        e("    s_cmp_eq_u32 s99, 0")
        e("    s_cbranch_scc0 L_end")
        spin("L_sp2", "s84", 5500)
        e(f"    v_mov_b32 v{vA}, 0")
        e(f"    buffer_atomic_umax v{vA}, v{vT0}, s[{sW}:{sW+3}], s98 offen sc0 sc1")
        e("    s_waitcnt vmcnt(0)")
        e(f"    v_readlane_b32 s50, v{vA}, 0")
        e(f"    v_readlane_b32 s51, v{vA}, {probe}")
        e("    s_nop 3")
        e("    s_not_b32 s50, s50")
        if probe in (0, 4):
            e("    s_not_b32 s51, s51")
        e("    s_sub_u32 s51, s51, s50")
        if probe >= 10:
            e("    s_getreg_b32 s51, hwreg(HW_REG_XCC_ID, 0, 4)")
            e(f"    s_add_u32 s51, s51, {probe - 10}")
            e("    s_and_b32 s51, s51, 7")
            e("    s_mul_i32 s51, s51, 100")
        e("    s_min_u32 s51, s51, 4000")
        e("    s_mul_i32 s51, s51, 10")
        e("    s_add_u32 s51, s51, 6000")
        spin("L_sp3", "s50", "s51")
        e("    s_endpgm")
    assert vB + 12 * nsets <= nv
    nvg = (nv + 3) // 4 * 4
    head = HDR + f"; @launch grid=({NWG},1,1) block=({(NW+1)*64},1,1) lds={lds_bytes}\n"
    head += f'.amdgcn_target "amdgcn-amd-amdhsa--gfx950"\n.text\n.globl {NAME}\n.p2align 8\n.type {NAME},@function\n'
    tail = f""".section .rodata,"a"
.p2align 6
.amdhsa_kernel {NAME}
  .amdhsa_next_free_vgpr {nvg}
  .amdhsa_next_free_sgpr {nsg}
  .amdhsa_accum_offset {nvg}
  .amdhsa_group_segment_fixed_size 0
  .amdhsa_kernarg_size 48
  .amdhsa_user_sgpr_count 2
  .amdhsa_user_sgpr_kernarg_segment_ptr 1
  .amdhsa_system_sgpr_workgroup_id_x 1
.end_amdhsa_kernel
"""
    if not touch:
        body = [l.replace("L_touch0", "L_helper") for l in o]
        return head + "\n".join(body) + "\n" + tail
    sz = sizes(head + "\n".join(l.replace("L_touch0", "L_helper").replace("L_touch1", "L_helper") for l in o) + "\n" + tail)
    body = []
    pos = 0; k = 0; n = 0; hot = True
    prev_uncond = False
    clen = {}
    cur = None; m = 0
    for idx, l in enumerate(o):
        if l.startswith("; crit begin"): cur = idx; clen[cur] = 0
        elif l.startswith("; crit end"): cur = None
        elif is_insn(l):
            if cur is not None: clen[cur] += sz[m]
        if is_insn(l): m += 1
    for idx, l in enumerate(o):
        if l.startswith("L_hotend"):
            hot = False
        nxt = (k + 1) * REGION
        force = idx in clen and pos + clen[idx] > nxt
        if force: assert clen[idx] + 4 <= REGION
        if hot and (force or ((is_insn(l) or prev_uncond) and pos + (0 if prev_uncond else 4) >= nxt)):
            if not prev_uncond:
                body.append(f"    s_branch L_over{k}"); pos += 4
            while pos < nxt:
                body.append("    s_endpgm"); pos += 4
            assert pos + 4 <= nxt + 64
            body.append(f"L_touch{k}:")
            body.append("    s_branch L_hbar" if (ldsp and k == 0) else f"    s_branch L_touch{k+1}"); pos += 4
            if not prev_uncond:
                body.append(f"L_over{k}:")
            k += 1
        if l.startswith("; crit"):
            continue
        body.append(l)
        if is_insn(l):
            pos += sz[n]; n += 1
            prev_uncond = l.strip().startswith(("s_branch", "s_endpgm"))
        else:
            prev_uncond = False
    assert n == len(sz)
    body = [l.replace(f"L_touch{k}", "L_helper") if l.strip().endswith(f"L_touch{k}") else l for l in body]
    return head + "\n".join(body) + "\n" + tail

if __name__ == "__main__":
    out = sys.argv[1]
    kw = {}
    for a in sys.argv[2:]:
        k, v = a.split("=")
        try:
            v = int(v, 0)
        except ValueError:
            pass
        kw[k] = v
    open(out, "w").write(gen(**kw))
```
